```python
import torch

def _softmax(x, axis=-1):
    return torch.softmax(x, dim=axis)
def _gelu(x):
    return torch.nn.functional.gelu(x, approximate="tanh")
def _silu(x):
    return torch.nn.functional.silu(x)
def _sigmoid(x):
    return torch.sigmoid(x)
def _layernorm(x, axis=-1, eps=1e-5):
    m = x.mean(dim=axis, keepdim=True)
    v = x.var(dim=axis, keepdim=True, unbiased=False)
    return (x - m) / torch.sqrt(v + eps)
def _scatter_add(tgt, idx, src, axis=0):
    return tgt.clone().index_add_(axis, idx, src)
def _segment_sum(src, seg, n):
    out = torch.zeros((n,) + src.shape[1:], dtype=src.dtype)
    return out.index_add_(0, seg, src)
def _pad(x, pw):
    flat = tuple(v for pair in reversed(pw) for v in pair)
    return torch.nn.functional.pad(x, flat)

kernel_name = 'parallel_sum__linear_attn_block__dense_activation_silu__prompt'

def setup_inputs():

    _w = (lambda a: (lambda t: t.to(torch.bfloat16) if t.is_floating_point() else t)(torch.as_tensor(a)))
    def _A_setup():
        B, S, D = 1, 2048, 576
        return {
            "x": _w((lambda *s: torch.randn(*s, dtype=torch.bfloat16) * 0.05)(B, S, D)),
            "wqkv": _w((lambda *s: torch.randn(*s, dtype=torch.bfloat16) * 0.1)(D, 3 * D)),
            "wo": _w((lambda *s: torch.randn(*s, dtype=torch.bfloat16) * 0.05)(D, D)),
        }
    _A_in = _A_setup()

    def _B_setup():
        B, S, D, F = 1, 2048, 576, 4608
        return {
            "x": _w((lambda *s: torch.randn(*s, dtype=torch.bfloat16) * 0.05)(B, S, D)),
            "w1": _w((lambda *s: torch.randn(*s, dtype=torch.bfloat16) * 0.8)(D, F) * (D ** -0.5)),
            "w2": _w((lambda *s: torch.randn(*s, dtype=torch.bfloat16) * 0.1)(F, D) * (F ** -0.5)),
        }
    _B_in = _B_setup()

    return {
        "A_x": _A_in["x"],
        "A_wqkv": _A_in["wqkv"],
        "A_wo": _A_in["wo"],
        "B_x": _B_in["x"],
        "B_w1": _B_in["w1"],
        "B_w2": _B_in["w2"],
    }

def reference(A_x, A_wqkv, A_wo, B_x, B_w1, B_w2):
    def _A_ref(x, wqkv, wo):
        B, S, D = x.shape
        H = 32; Dh = D // H
        qkv = (lambda x, *d: x.permute(*d))((x @ wqkv).reshape(B, S, 3, H, Dh), 2, 0, 3, 1, 4)
        q, k, v = qkv[0], qkv[1], qkv[2]
        phi = lambda t: torch.where(t > 0, t + 1, torch.exp(t)) + 1e-6
        pq, pk = phi(q), phi(k)
        kv = torch.einsum("bhsd,bhse->bhde", pk, v)
        z = torch.einsum("bhsd->bhd", pk)
        num = torch.einsum("bhqd,bhde->bhqe", pq, kv)
        den = torch.einsum("bhqd,bhd->bhq", pq, z)[..., None] + 1e-6
        o = num / den
        return (lambda x, *d: x.permute(*d))(o, 0, 2, 1, 3).reshape(B, S, D) @ wo

    def _B_ref(x, w1, w2):
        h = torch.einsum("bsd,df->bsf", x, w1)
        h = _silu(h)
        out = torch.einsum("bsf,fd->bsd", h, w2)
        return out

    x = A_x
    xn = _layernorm(x, axis=-1)
    return x + _A_ref(xn, A_wqkv, A_wo) + _B_ref(xn, B_w1, B_w2)
```

```python
import sys, struct
KNAME = "parallel_sum__linear_attn_block__dense_activation_silu__prompt"
def f2u(x): return struct.unpack("<I", struct.pack("<f", x))[0]

class Op:
    def __init__(self, text, kind="valu", cost=None):
        self.text = text; self.kind = kind
        n = text.count("\n") + 1
        self.cost = cost if cost is not None else (2.0 if kind == "trans" else 1.0 * n)
class Asm:
    def __init__(self): self.l = []
    def __call__(self, s): self.l.append(s)
    def text(self): return "\n".join(self.l) + "\n"

RING = 0; RING_W = 12288
HB = 49152
QB = 122880; QS = 456
OB = 152064; OS = 176
STAT = 163328
LDS_TOTAL = 163840
V_LANE = 1
V_CA, V_CB, V_NA, V_NB = 2, 3, 4, 5
V_TA, V_TB, V_PA, V_PB = 6, 7, 8, 9
V_C1, V_SD, V_RS = 10, 12, 14
V_EP = 16; V_L16 = 17
V_ROW8, V_SC16, V_SC = 18, 19, 20
VT = 21
ACC = 24; EPI = 88; AREG = 152; TMP = 176
BOV_F = 224; BOV_P = 184
S_WOB = 2; S_R, S_J, S_W, S_WG, S_W2B = 3, 4, 5, 6, 7
SRD_X, SRD_C, SRD_N, SRD_WS, SRD_DBG, SRD_WO = 8, 12, 16, 20, 24, 28
P_QKV, P_W1, P_W2 = 32, 34, 36
S_RING = 38; S_NONCE = 39
TABC = 40; TABN = 81; S_M0 = 87
S_RHO = 91
S_T0, S_T1, S_T2, S_T3 = 92, 93, 94, 95
S_LO, S_CE, S_C6, S_GOFF = 96, 97, 98, 99
S_U8 = 100; S_UNIT = 101
D = 6
SZ_X = 2048 * 1152; SZ_QKV = 576 * 3456; SZ_W1 = 576 * 9216; SZ_W2 = 4608 * 1152; SZ_WO = 576 * 1152
WS_PART = 0
WS_KVP = 19 << 20
WS_KVT = 21 << 20
WS_F1 = WS_KVT + (1 << 16)
WS_F2 = WS_F1 + 4096
WS_FP = WS_F2 + 4096
WS_DBG = 22 << 20
WS_SIZE = 256 << 20
OOB = "0x7f000000"
STAMPS = False
SPIN = 20000

def breg(bi, bov):
    if bi < 64: return "a[%d:%d]" % (4 * bi, 4 * bi + 3)
    return "v[%d:%d]" % (bov + 4 * (bi - 64), bov + 4 * (bi - 64) + 3)
def aset_seq(n):
    return [i % 2 for i in range(n)] if n % 2 == 0 else [i % 2 for i in range(n - 1)] + [2]
def slot_info(slot, exact=False):
    if slot < 6:
        if exact: return ("s_add_u32 m0, s%d, %d" % (S_RING, slot * 2048), 0, slot * 2048)
        return ("s_mov_b32 m0, s%d" % (S_M0 + slot // 2), (slot % 2) * 2048, slot * 2048)
    return ("s_mov_b32 m0, s%d" % (S_M0 + 3), 0, HB - RING)
def spread(ops, nslots):
    total = sum(o.cost for o in ops)
    per = total / nslots if nslots else 0
    slots = [[] for _ in range(nslots)]
    acc = 0.0; si = 0
    for o in ops:
        while si < nslots - 1 and acc >= per * (si + 1) - 1e-9: si += 1
        slots[si].append(o); acc += o.cost
    return slots
def stamp(A, k):
    if not STAMPS: return
    A("s_memrealtime s[%d:%d]\ns_waitcnt lgkmcnt(0)\nv_writelane_b32 v0, s%d, %d" % (S_T0, S_T1, S_T0, k))

def tr_pair(A, slot, aset, which, perm):
    timm = slot_info(slot)[2]
    va = (V_PA, V_PB)[which] if perm else (V_TA, V_TB)[which]
    off2 = 1024 if perm else 512
    ar = AREG + 8 * aset + 4 * which
    A("ds_read_b64_tr_b16 v[%d:%d], v%d offset:%d" % (ar, ar + 1, va, timm))
    A("ds_read_b64_tr_b16 v[%d:%d], v%d offset:%d" % (ar + 2, ar + 3, va, timm + off2))

def dma_instrs(ctx, tabreg, slot, exact=False):
    m0s, imm, _ = slot_info(slot, exact)
    srd = {"C": SRD_C, "N": SRD_N, "WO": SRD_WO}[ctx]
    va, vb = (V_NA, V_NB) if ctx == "N" else (V_CA, V_CB)
    i1 = "buffer_load_dwordx4 v%d, s[%d:%d], s%d offen offset:%d lds" % (va, srd, srd + 3, tabreg, imm)
    i2 = "buffer_load_dwordx4 v%d, s[%d:%d], s%d offen offset:%d lds" % (vb, srd, srd + 3, tabreg, imm + 1024)
    return m0s, i1, i2

class Body:
    pass

def emit_unit(A, steps, dma_plan, pre_tags, next0, placed, to_epi=True, aset=None):
    n = len(steps)
    if aset is None: aset = aset_seq(n)
    vmq = [t for t in pre_tags for _ in range(2)]
    lgq = [("t", 0)] * 4
    last_m0 = None
    for t in range(n):
        want = ("d", t + 1) if t + 1 < n else (("n", 0) if next0 is not None else None)
        vmn = None
        if want is not None and want in vmq:
            idx = max(i for i, e in enumerate(vmq) if e == want)
            vmn = len(vmq) - 1 - idx; vmq = vmq[idx + 1:]
        idx = max(i for i, e in enumerate(lgq) if e == ("t", t))
        lgn = len(lgq) - 1 - idx; lgq = lgq[idx + 1:]
        assert lgn < 16 and (vmn is None or vmn < 64)
        if vmn is None: A("s_waitcnt lgkmcnt(%d)" % lgn)
        else: A("s_waitcnt vmcnt(%d) lgkmcnt(%d)" % (vmn, lgn))
        if t + 1 < n: nx = (steps[t + 1]["slot"], aset[t + 1], steps[t + 1]["perm"])
        elif next0 is not None: nx = (next0["slot"], next0["aset"], next0["perm"])
        else: nx = None
        dp = dma_plan[t]
        if dp is not None: m0s, i1, i2 = dma_instrs(dp[0], dp[1], dp[2], dp[3])
        def put(k):
            for o in placed.get((t, k), []):
                A(o.text)
                if o.kind == "lds": lgq.append(("x", 0))
                if o.kind == "vmem": vmq.append(("x", 0))
        def mfma(tile, rg):
            ai = tile * 2 + rg
            d = (EPI if (t == n - 1 and to_epi) else ACC) + 16 * ai
            c = "0" if t == 0 else "v[%d:%d]" % (ACC + 16 * ai, ACC + 16 * ai + 15)
            ar = AREG + 8 * aset[t] + 4 * tile
            A("v_mfma_f32_32x32x16_bf16 v[%d:%d], v[%d:%d], %s, %s" % (d, d + 15, ar, ar + 3, steps[t]["b"][rg], c))
        if nx: tr_pair(A, nx[0], nx[1], 0, nx[2]); lgq += [("t", t + 1)] * 2
        if dp is not None and last_m0 != m0s: A(m0s); last_m0 = m0s
        mfma(0, 0)
        if dp is not None: A(i1); vmq.append(dp[4])
        put(0)
        if nx: tr_pair(A, nx[0], nx[1], 1, nx[2]); lgq += [("t", t + 1)] * 2
        mfma(0, 1)
        if dp is not None: A(i2); vmq.append(dp[4])
        put(1)
        mfma(1, 0)
        put(2)
        mfma(1, 1)
        put(3)

def place(ops, t0, t1, placed=None):
    placed = {} if placed is None else placed
    nsl = 4 * (t1 - t0 + 1)
    sl = spread(ops, nsl)
    for i, s in enumerate(sl):
        placed.setdefault((t0 + i // 4, i % 4), []).extend(s)
    return placed

def full_F(A, placed):
    steps = [dict(b=(breg(2 * t, BOV_F), breg(2 * t + 1, BOV_F)), perm=False, slot=t % 6) for t in range(36)]
    plan = []
    for t in range(36):
        f = t + D
        if f < 36: plan.append(("C", TABC + f, f % 6, False, ("d", f)))
        else: plan.append(("N", TABN + f - 36, (f - 36) % 6, False, ("n", f - 36)))
    emit_unit(A, steps, plan, [("d", f) for f in range(1, D)], dict(slot=0, aset=0, perm=False), placed)

def short_F(A, w, placed):
    steps = [dict(b=(breg(2 * (9 * w + t), BOV_F), breg(2 * (9 * w + t) + 1, BOV_F)), perm=False, slot=t % 6) for t in range(9)]
    plan = [("C", TABC + t + D, (t + D) % 6, False, ("d", t + D)) if t + D < 9 else None for t in range(9)]
    emit_unit(A, steps, plan, [("d", f) for f in range(1, D)], None, placed, to_epi=False, aset=[t % 2 for t in range(9)])

def full_P(A, placed, next_short):
    steps = [dict(b=(breg(2 * t, BOV_P), breg(2 * t + 1, BOV_P)), perm=(t < 36), slot=t % 7) for t in range(41)]
    plan = []
    for t in range(41):
        f = t + D
        if f < 41: plan.append(("WO" if f >= 36 else "C", TABC + f, f % 7, f == 36, ("d", f)))
        else: plan.append(("N", TABN + f - 41, f - 41, False, ("n", f - 41)))
    emit_unit(A, steps, plan, [("d", f) for f in range(1, D)], dict(slot=0, aset=0, perm=True), placed)

P_RANGE = [(0, 10), (10, 20), (20, 30), (30, 41)]
def short_P(A, w, placed):
    k0, k1 = P_RANGE[w]
    n = k1 - k0
    steps = [dict(b=(breg(2 * (k0 + t), BOV_P), breg(2 * (k0 + t) + 1, BOV_P)), perm=(k0 + t < 36), slot=t % 7) for t in range(n)]
    plan = []
    for t in range(n):
        f = t + D
        if f < n: plan.append(("WO" if k0 + f >= 36 else "C", TABC + f, f % 7, False, ("d", f)))
        else: plan.append(None)
    emit_unit(A, steps, plan, [("d", f) for f in range(1, min(D, n))], None, placed, to_epi=False, aset=[t % 2 for t in range(n)])

def silu_group(e0, rg, T, P0):
    ops = []
    for i in range(4): ops.append(Op("v_mul_f32 v%d, v%d, v%d" % (T + i, e0 + i, V_C1 + rg)))
    for i in range(4): ops.append(Op("v_exp_f32 v%d, v%d" % (T + i, T + i), "trans"))
    for i in range(4): ops.append(Op("v_fma_f32 v%d, v%d, v%d, v%d" % (T + i, T + i, V_SD + rg, V_SD + rg)))
    for i in range(4): ops.append(Op("v_rcp_f32 v%d, v%d" % (T + i, T + i), "trans"))
    for i in range(4): ops.append(Op("v_mul_f32 v%d, v%d, v%d" % (T + i, e0 + i, T + i)))
    ops.append(Op("v_cvt_pk_bf16_f32 v%d, v%d, v%d" % (P0, T, T + 1)))
    ops.append(Op("v_cvt_pk_bf16_f32 v%d, v%d, v%d" % (P0 + 1, T + 2, T + 3)))
    return ops
def silu_ops():
    ops = []; n = 0
    for tile in range(2):
        for rg in range(2):
            for s in range(2):
                P = TMP + 16 + 4 * (n % 2); n += 1
                for gq in range(2):
                    ops += silu_group(EPI + 16 * (tile * 2 + rg) + 8 * s + 4 * gq, rg, TMP + 4 * ((s * 2 + gq) % 4), P + 2 * gq)
                ops.append(Op("ds_write_b128 v%d, v[%d:%d] offset:%d" % (V_EP, P, P + 3, tile * 4096 + s * 2048 + rg * 1024), "lds"))
    return ops
def q_ops():
    ops = []; n = 0
    for tile in range(2):
        for g in range(4):
            k = 4 * tile + g
            ops.append(Op("\n".join([
                "s_add_u32 s%d, s%d, %d" % (S_T0, S_U8, k),
                "s_lshl_b32 s%d, s%d, 4" % (S_T1, S_T0),
                "s_cmp_lt_u32 s%d, 27" % S_T0,
                "s_cselect_b32 s%d, s%d, 0x40000" % (S_GOFF, S_T1),
                "s_sub_u32 s%d, s%d, 9" % (S_T1, S_T0),
                "s_cmp_lt_u32 s%d, 9" % S_T1,
                "s_cselect_b32 s%d, 0xff800000, 0" % S_LO,
                "s_cselect_b32 s%d, 0, 1.0" % S_CE,
                "s_cselect_b32 s%d, 0, 0x358637bd" % S_C6]), "salu", cost=5))
            ops.append(Op("v_add_u32 v%d, s%d, v%d" % (VT, S_GOFF, V_EP)))
            for rg in range(2):
                T = TMP + 12 * (n % 2); n += 1
                e0 = EPI + 16 * (tile * 2 + rg) + 4 * g
                for i in range(4): ops.append(Op("v_mul_f32 v%d, v%d, v%d" % (T + i, e0 + i, V_RS + rg)))
                for i in range(4): ops.append(Op("v_mul_f32 v%d, 0x3fb8aa3b, v%d" % (T + 4 + i, T + i)))
                for i in range(4): ops.append(Op("v_min_f32 v%d, 0, v%d" % (T + 4 + i, T + 4 + i)))
                for i in range(4): ops.append(Op("v_exp_f32 v%d, v%d" % (T + 4 + i, T + 4 + i), "trans"))
                for i in range(4): ops.append(Op("v_max_f32 v%d, s%d, v%d" % (T + i, S_LO, T + i)))
                for i in range(4): ops.append(Op("v_fma_f32 v%d, v%d, s%d, v%d" % (T + i, T + 4 + i, S_CE, T + i)))
                for i in range(4): ops.append(Op("v_add_f32 v%d, s%d, v%d" % (T + i, S_C6, T + i)))
                ops.append(Op("v_cvt_pk_bf16_f32 v%d, v%d, v%d" % (T + 8, T, T + 1)))
                ops.append(Op("v_cvt_pk_bf16_f32 v%d, v%d, v%d" % (T + 9, T + 2, T + 3)))
                ops.append(Op("ds_write_b64 v%d, v[%d:%d] offset:%d" % (VT, T + 8, T + 9, rg * 32 * QS), "lds"))
    return ops
def store_ops(flavor="sc1"):
    ops = []
    for ai in range(4):
        e0 = EPI + 16 * ai
        for half in range(2):
            b = e0 + 8 * half
            for p in range(4): ops.append(Op("v_cvt_pk_bf16_f32 v%d, v%d, v%d" % (b + p, b + 2 * p, b + 2 * p + 1)))
            ops.append(Op("buffer_store_dwordx4 v[%d:%d], v%d, s[%d:%d], s%d offen offset:%d %s" % (b, b + 3, V_L16, SRD_WS, SRD_WS + 3, S_UNIT, (ai % 2) * 2048 + half * 1024, flavor), "vmem"))
        if ai == 1: ops.append(Op("s_add_u32 s%d, s%d, 4096" % (S_UNIT, S_UNIT), "salu"))
    return ops
def emit_ops(A, ops):
    for o in ops: A(o.text)

def set_srd(A, dst, plo, size):
    A("s_mov_b32 s%d, s%d\ns_mov_b32 s%d, s%d\ns_mov_b32 s%d, %d\ns_mov_b32 s%d, 0x20000" % (dst, plo, dst + 1, plo + 1, dst + 2, size, dst + 3))
def emit_tab(A, kind, base, frange, R, k0=0, exact36=True):
    for f in frange:
        kk = k0 + f
        ex = (kind == "P" and kk == 36 and exact36 and k0 == 0)
        adj = slot_info(f % R, ex)[1]
        if kind == "Q": A("s_mov_b32 s%d, %d" % (base + f, kk * 16 * 3456 - adj))
        elif kind == "F": A("s_mov_b32 s%d, %d" % (base + f, kk * 16 * 9216 - adj))
        elif kk < 36: A("s_add_u32 s%d, s%d, %d" % (base + f, S_W2B, (kk * 16 * 1152 - adj) & 0xffffffff))
        else:
            c = (kk - 36) * 16 * 1152 - adj
            assert c >= 0, (kk, f)
            A("s_add_u32 s%d, s%d, %d" % (base + f, S_WOB, c))
def next_F(A, s_fu, kq=False):
    set_srd(A, SRD_N, P_W1, SZ_W1)
    A("s_mul_i32 s%d, s%d, 1152" % (S_T0, S_J))
    A("s_lshl_b32 s%d, s%d, 7" % (S_T1, s_fu))
    A("s_add_u32 s%d, s%d, s%d" % (S_T0, S_T0, S_T1))
    if kq:
        A("s_mul_i32 s%d, s%d, %d" % (S_T1, S_W, 9 * 16 * 9216))
        A("s_add_u32 s%d, s%d, s%d" % (S_T0, S_T0, S_T1))
    A("v_mul_u32_u24 v%d, 9216, v%d" % (V_NA, V_ROW8))
    A("v_add3_u32 v%d, v%d, v%d, s%d" % (V_NA, V_NA, V_SC16, S_T0))
    A("v_add_u32 v%d, %d, v%d" % (V_NB, 8 * 9216 - 1024, V_NA))
    emit_tab(A, "F", TABN, range(D), 6)
def next_Q(A, s_u):
    set_srd(A, SRD_N, P_QKV, SZ_QKV)
    t0, t1, t2 = 21, 22, 23
    A("s_lshl_b32 s%d, s%d, 3" % (S_T0, s_u))
    A("v_add_u32 v%d, s%d, v%d" % (t0, S_T0, V_SC))
    A("v_mul_u32_u24 v%d, 57, v%d\nv_lshrrev_b32 v%d, 9, v%d" % (t1, t0, t1, t1))
    A("v_mul_u32_u24 v%d, 9, v%d\nv_sub_u32 v%d, v%d, v%d\nv_lshlrev_b32 v%d, 4, v%d" % (t2, t1, t2, t0, t2, t2, t2))
    A("v_add_u32 v%d, 1, v%d\nv_cmp_eq_u32 vcc, 3, v%d\nv_mul_u32_u24 v%d, 1152, v%d\ns_nop 0" % (t1, t1, t1, t1, t1))
    A("v_cndmask_b32_e64 v%d, v%d, 0, vcc" % (t1, t1))
    A("s_mul_i32 s%d, s%d, 144" % (S_T0, S_J))
    A("v_add3_u32 v%d, v%d, v%d, s%d" % (t1, t1, t2, S_T0))
    A("v_mul_u32_u24 v%d, 3456, v%d\nv_add_u32 v%d, v%d, v%d" % (V_NA, V_ROW8, V_NA, V_NA, t1))
    A("v_cmp_le_u32 vcc, 27, v%d\nv_mov_b32 v%d, %s\ns_nop 0" % (t0, t2, OOB))
    A("v_cndmask_b32 v%d, v%d, v%d, vcc" % (V_NA, V_NA, t2))
    A("v_add_u32 v%d, %d, v%d" % (V_NB, 8 * 3456 - 1024, V_NA))
    emit_tab(A, "Q", TABN, range(D), 6)
def next_P(A, s_nu, tabs=True):
    set_srd(A, SRD_N, P_W2, SZ_W2)
    A("s_lshl_b32 s%d, s%d, 7" % (S_T1, s_nu))
    A("v_mul_u32_u24 v%d, 1152, v%d" % (V_NA, V_ROW8))
    A("v_add3_u32 v%d, v%d, v%d, s%d" % (V_NA, V_NA, V_SC16, S_T1))
    A("v_add_u32 v%d, %d, v%d" % (V_NB, 8 * 1152 - 1024, V_NA))
    if tabs: emit_tab(A, "P", TABN, range(D), 7)
def advance(A):
    for i in range(3): A("s_mov_b32 s%d, s%d" % (SRD_C + i, SRD_N + i))
    A("v_mov_b32 v%d, v%d\nv_mov_b32 v%d, v%d" % (V_CA, V_NA, V_CB, V_NB))
def issue_first(A, n=D):
    for f in range(n):
        m0s, i1, i2 = dma_instrs("N", TABN + f, f)
        A(m0s); A("s_nop 0"); A(i1); A(i2)

def gen_prefetch(A, part):
    A("s_lshl_b32 s%d, s%d, 6" % (S_T0, S_W))
    A("v_add_u32 v100, s%d, v%d" % (S_T0, V_LANE))
    if part == "qkv":
        A("v_mul_u32_u24 v101, 5462, v100\nv_lshrrev_b32 v101, 16, v101")
        A("v_mul_u32_u24 v102, 12, v101\nv_sub_u32 v102, v100, v102")
        A("v_lshrrev_b32 v103, 2, v102\nv_mul_u32_u24 v103, 1152, v103")
        A("v_and_b32 v102, 3, v102\nv_lshl_add_u32 v103, v102, 6, v103")
        A("v_mul_u32_u24 v101, 3456, v101\nv_add_u32 v101, v101, v103")
        A("s_mul_i32 s%d, s%d, 144\ns_andn2_b32 s%d, s%d, 127" % (S_T0, S_J, S_T0, S_T0))
        A("s_mul_i32 s%d, s%d, %d\ns_add_u32 s%d, s%d, s%d" % (S_T1, S_R, 18 * 3456, S_T0, S_T0, S_T1))
        A("v_cmp_le_u32 vcc, 216, v100\nv_mov_b32 v102, %s\ns_nop 0\nv_cndmask_b32 v101, v101, v102, vcc" % OOB)
        set_srd(A, SRD_N, P_QKV, SZ_QKV)
        A("buffer_load_dword v168, v101, s[%d:%d], s%d offen" % (SRD_N, SRD_N + 3, S_T0))
        return 1
    stride, ptr, sz = (9216, P_W1, SZ_W1) if part == "w1" else (1152, P_W2, SZ_W2)
    set_srd(A, SRD_N, ptr, sz)
    if part == "w1":
        A("s_mul_i32 s%d, s%d, 1152" % (S_T0, S_J))
        A("s_mul_i32 s%d, s%d, %d\ns_add_u32 s%d, s%d, s%d" % (S_T1, S_R, 18 * 9216, S_T0, S_T0, S_T1))
    else:
        A("s_mul_i32 s%d, s%d, %d\ns_add_u32 s%d, s%d, s%d" % (S_T1, S_R, 18 * 1152, S_T0, S_W2B, S_T1))
    for k in range(2):
        if k == 1: A("v_add_u32 v100, 256, v100")
        A("v_mul_u32_u24 v101, 3641, v100\nv_lshrrev_b32 v101, 16, v101")
        A("v_mul_u32_u24 v102, 18, v101\nv_sub_u32 v102, v100, v102")
        A("v_mul_u32_u24 v101, %d, v101\nv_lshl_add_u32 v101, v102, 6, v101" % stride)
        A("v_cmp_le_u32 vcc, 324, v100\nv_mov_b32 v102, %s\ns_nop 0\nv_cndmask_b32 v101, v101, v102, vcc" % OOB)
        A("buffer_load_dword v%d, v101, s[%d:%d], s%d offen" % (169 + k + (2 if part == "w2" else 0), SRD_N, SRD_N + 3, S_T0))
    if part == "w2":
        A("s_mul_i32 s%d, s%d, 41" % (S_T0, S_R))
        A("v_add_u32 v100, s%d, v%d" % (S_T0, V_LANE))
        A("v_lshlrev_b32 v101, 6, v100")
        A("v_cmp_le_u32 vcc, 41, v%d\nv_mov_b32 v102, %s\ns_nop 0\nv_cndmask_b32 v101, v101, v102, vcc" % (V_LANE, OOB))
        A("buffer_load_dword v173, v101, s[%d:%d], s%d offen" % (SRD_WO, SRD_WO + 3, S_WOB))
        return 3
    return 2

def poll_flags(A, label, s_off, nlanes, vaddr=21, vdat=22):
    A("v_lshlrev_b32 v%d, 2, v%d" % (vaddr, V_LANE))
    A("v_cmp_gt_u32 vcc, %d, v%d" % (nlanes, V_LANE))
    A("s_mov_b64 s[0:1], vcc")
    A("s_mov_b32 s%d, 0" % S_T2)
    A("%s:" % label)
    A("buffer_load_dword v%d, v%d, s[20:23], s%d offen sc1" % (vdat, vaddr, s_off))
    A("s_add_u32 s%d, s%d, 1" % (S_T2, S_T2))
    A("s_waitcnt vmcnt(0)")
    A("v_cmp_ne_u32 vcc, s%d, v%d" % (S_NONCE, vdat))
    A("s_and_b64 vcc, vcc, s[0:1]")
    A("s_cbranch_vccz %s_ok" % label)
    A("s_cmp_gt_u32 s%d, %d\ns_cbranch_scc1 %s_ok" % (S_T2, SPIN, label))
    A("s_sleep 1")
    A("s_branch %s" % label)
    A("%s_ok:" % label)

def set_flag(A, s_off):
    A("v_mov_b32 v21, s%d\nv_mov_b32 v22, 0" % S_NONCE)
    A("v_cmp_eq_u32 vcc, 0, v%d\ns_and_saveexec_b64 s[0:1], vcc" % V_LANE)
    A("buffer_store_dword v21, v22, s[20:23], s%d offen sc1" % s_off)
    A("s_mov_b64 exec, s[0:1]")

def gen_prologue(A):
    K = KNAME + "_kernel"
    A(".text\n.globl %s\n.p2align 8\n.type %s,@function\n%s:" % (K, K, K))
    A("s_cmp_ge_u32 s2, 256\ns_cbranch_scc1 L_end")
    A("s_load_dwordx4 s[8:11], s[0:1], 0")
    A("s_load_dwordx2 s[28:29], s[0:1], 16")
    A("s_load_dwordx4 s[32:35], s[0:1], 32")
    A("s_load_dwordx4 s[20:23], s[0:1], 56")
    A("s_load_dwordx2 s[16:17], s[0:1], 48")
    A("v_and_b32 v%d, 63, v0\nv_lshrrev_b32 v2, 6, v0" % V_LANE)
    A("s_lshr_b32 s%d, s2, 3\ns_and_b32 s%d, s2, 7" % (S_R, S_J))
    A("v_readfirstlane_b32 s%d, v2" % S_W)
    A("s_mov_b32 s%d, s2" % S_WG)
    A("s_memrealtime s[40:41]")
    A("s_waitcnt lgkmcnt(0)")
    stamp(A, 0)
    A("s_mov_b32 s36, s34\ns_mov_b32 s37, s35\ns_mov_b32 s34, s32\ns_mov_b32 s35, s33\ns_mov_b32 s32, s10\ns_mov_b32 s33, s11")
    A("s_mov_b32 s10, %d\ns_mov_b32 s11, 0x20000" % SZ_X)
    A("s_mov_b32 s24, s20\ns_mov_b32 s25, s21\ns_mov_b32 s26, 256\ns_mov_b32 s27, 0x20000")
    A("s_mov_b32 s20, s22\ns_mov_b32 s21, s23\ns_mov_b32 s22, %d\ns_mov_b32 s23, 0x20000" % WS_SIZE)
    A("s_mov_b32 s30, %d\ns_mov_b32 s31, 0x20000\ns_mov_b32 s15, 0x20000" % SZ_WO)
    A("v_lshrrev_b32 v2, 2, v%d" % V_LANE)
    A("s_lshl_b32 s%d, s%d, 6\ns_lshl_b32 s%d, s%d, 4\ns_add_u32 s%d, s%d, s%d" % (S_T0, S_R, S_T1, S_W, S_T0, S_T0, S_T1))
    A("v_add_u32 v2, s%d, v2\nv_mul_u32_u24 v2, 1152, v2" % S_T0)
    A("v_and_b32 v3, 3, v%d\nv_lshl_add_u32 v2, v3, 4, v2" % V_LANE)
    XR = ACC
    for i in range(18):
        A("buffer_load_dwordx4 v[%d:%d], v2, s[8:11], 0 offen offset:%d" % (XR + 4 * i, XR + 4 * i + 3, 64 * i))
    nyoung = 0
    A("s_or_b32 s%d, s%d, s%d\ns_cmp_lg_u32 s%d, 0\ns_cbranch_scc1 L_nononce" % (S_T0, S_WG, S_W, S_T0))
    A("s_or_b32 s40, s40, 1\nv_mov_b32 v21, s40\nv_mov_b32 v22, 0")
    A("v_cmp_eq_u32 vcc, 0, v%d\ns_and_saveexec_b64 s[0:1], vcc" % V_LANE)
    A("buffer_store_dword v21, v22, s[24:27], 0 offen sc1")
    A("s_mov_b64 exec, s[0:1]")
    A("L_nononce:")
    A("v_lshrrev_b32 v%d, 3, v%d" % (V_ROW8, V_LANE))
    A("v_bfe_u32 v21, v%d, 4, 1\nv_lshlrev_b32 v21, 2, v21" % V_LANE)
    A("v_and_b32 v%d, 7, v%d\nv_xor_b32 v%d, v%d, v21" % (V_SC, V_LANE, V_SC, V_SC))
    A("v_lshlrev_b32 v%d, 4, v%d\nv_lshlrev_b32 v%d, 4, v%d" % (V_SC16, V_SC, V_L16, V_LANE))
    A("s_mul_i32 s%d, s%d, %d" % (S_RING, S_W, RING_W))
    for i in range(3): A("s_add_u32 s%d, s%d, %d" % (S_M0 + i, S_RING, i * 4096))
    A("s_add_u32 s%d, s%d, %d" % (S_M0 + 3, S_RING, HB - RING))
    A("v_bfe_u32 v21, v%d, 2, 2\nv_lshlrev_b32 v22, 7, v21" % V_LANE)
    A("v_bfe_u32 v23, v%d, 3, 1\nv_lshl_add_u32 v22, v23, 6, v22" % V_LANE)
    A("v_bfe_u32 v23, v%d, 4, 1\nv_lshl_add_u32 v22, v23, 5, v22" % V_LANE)
    A("v_and_b32 v23, 3, v%d\nv_lshl_add_u32 v22, v23, 3, v22" % V_LANE)
    A("v_add_u32 v22, s%d, v22" % S_RING)
    A("v_lshrrev_b32 v23, 5, v%d" % V_LANE)
    A("v_lshl_add_u32 v%d, v23, 10, v22\nv_xor_b32 v%d, 64, v%d" % (V_TA, V_TB, V_TA))
    A("v_lshl_add_u32 v%d, v23, 9, v22\nv_xor_b32 v%d, 64, v%d" % (V_PA, V_PB, V_PA))
    A("s_mul_i32 s%d, s%d, %d\ns_mul_i32 s%d, s%d, %d" % (S_W2B, S_J, 576 * 1152, S_WOB, S_J, 72 * 1152))
    A("s_mov_b32 s%d, s16\ns_mov_b32 s%d, s17" % (S_LO, S_CE))
    nyoung += gen_prefetch(A, "qkv")
    next_Q(A, S_W)
    issue_first(A); nyoung += 2 * D
    advance(A)
    emit_tab(A, "Q", TABC, range(D, 36), 6)
    nyoung += gen_prefetch(A, "w1")
    nyoung += gen_prefetch(A, "w2")
    next_F(A, S_W)
    A("s_waitcnt vmcnt(%d)" % nyoung)
    stamp(A, 1)
    A("v_mov_b32 v21, 0\nbuffer_load_dword v174, v21, s[24:27], 0 offen sc1")
    A("s_mov_b32 s%d, 0x3f803f80" % S_T0)
    A("v_mov_b32 v96, 0\nv_mov_b32 v97, 0\nv_mov_b32 v98, 0\nv_mov_b32 v99, 0")
    for i in range(72): A("v_dot2_f32_bf16 v%d, v%d, s%d, v%d" % (96 + i % 4, XR + i, S_T0, 96 + i % 4))
    A("s_nop 3\nv_add_f32 v96, v96, v97\nv_add_f32 v98, v98, v99\ns_nop 0\nv_add_f32 v96, v96, v98\ns_nop 1")
    A("v_add_f32_dpp v96, v96, v96 quad_perm:[1,0,3,2] row_mask:0xf bank_mask:0xf\ns_nop 1")
    A("v_add_f32_dpp v96, v96, v96 quad_perm:[2,3,0,1] row_mask:0xf bank_mask:0xf")
    A("v_mul_f32 v96, 0x%08x, v96" % f2u(1.0 / 576))
    A("v_cvt_pk_bf16_f32 v97, v96, v96\nv_lshlrev_b32 v97, 16, v97")
    A("v_mov_b32 v100, 0\nv_mov_b32 v101, 0\nv_mov_b32 v102, 0\nv_mov_b32 v103, 0")
    A("s_lshr_b32 s%d, s%d, 1\ns_mul_i32 s%d, s%d, %d" % (S_T0, S_W, S_T0, S_T0, 72 * 544))
    A("s_and_b32 s%d, s%d, 1\ns_lshl_b32 s%d, s%d, 8\ns_add_u32 s%d, s%d, s%d\ns_add_u32 s%d, s%d, %d" % (S_T1, S_W, S_T1, S_T1, S_T0, S_T0, S_T1, S_T0, S_T0, HB))
    A("v_and_b32 v112, 3, v%d\nv_mul_u32_u24 v112, 544, v112" % V_LANE)
    A("v_lshrrev_b32 v113, 2, v%d\nv_lshl_add_u32 v112, v113, 4, v112\nv_add_u32 v112, s%d, v112" % (V_LANE, S_T0))
    for i in range(72):
        t = 104 + 2 * (i % 4)
        A("v_lshlrev_b32 v%d, 16, v%d\nv_and_b32 v%d, 0xffff0000, v%d" % (t, XR + i, t + 1, XR + i))
        A("v_sub_f32 v%d, v%d, v97\nv_sub_f32 v%d, v%d, v97" % (t, t, t + 1, t + 1))
        A("v_cvt_pk_bf16_f32 v%d, v%d, v%d" % (XR + i, t, t + 1))
        if i % 4 == 3:
            A("ds_write_b128 v112, v[%d:%d] offset:%d" % (XR + i - 3, XR + i, (i // 4) * 2176))
    for i in range(72): A("v_dot2_f32_bf16 v%d, v%d, v%d, v%d" % (100 + i % 4, XR + i, XR + i, 100 + i % 4))
    A("s_nop 3\nv_add_f32 v100, v100, v101\nv_add_f32 v102, v102, v103\ns_nop 0\nv_add_f32 v100, v100, v102\ns_nop 1")
    A("v_add_f32_dpp v100, v100, v100 quad_perm:[1,0,3,2] row_mask:0xf bank_mask:0xf\ns_nop 1")
    A("v_add_f32_dpp v100, v100, v100 quad_perm:[2,3,0,1] row_mask:0xf bank_mask:0xf")
    A("v_mul_f32 v100, 0x%08x, v100" % f2u(1.0 / 576))
    A("v_sub_f32 v98, v96, v97\nv_fma_f32 v100, -v98, v98, v100\nv_max_f32 v100, 0, v100")
    A("v_cvt_pk_bf16_f32 v100, v100, v100\nv_lshlrev_b32 v100, 16, v100")
    A("v_add_f32 v100, 0x%08x, v100" % f2u(1e-5))
    A("v_cvt_pk_bf16_f32 v100, v100, v100\nv_lshlrev_b32 v100, 16, v100")
    A("v_sqrt_f32 v100, v100\ns_nop 0")
    A("v_cvt_pk_bf16_f32 v100, v100, v100\nv_lshlrev_b32 v100, 16, v100")
    A("s_lshl_b32 s%d, s%d, 6\ns_add_u32 s%d, s%d, %d" % (S_T0, S_W, S_T0, S_T0, STAT))
    A("v_lshlrev_b32 v113, 2, v113\nv_add_u32 v113, s%d, v113" % S_T0)
    A("ds_write_b32 v113, v100")
    A("s_waitcnt lgkmcnt(0)\ns_barrier")
    stamp(A, 2)
    A("v_and_b32 v112, 31, v%d\nv_lshlrev_b32 v112, 4, v112" % V_LANE)
    A("v_lshrrev_b32 v113, 5, v%d\nv_mul_u32_u24 v113, 544, v113" % V_LANE)
    A("v_add_u32 v112, v112, v113\nv_add_u32 v112, %d, v112\nv_add_u32 v113, %d, v112" % (HB, 72 * 544))
    cnt = 0
    for t in range(36):
        for rg in range(2):
            A("ds_read_b128 %s, v%d offset:%d" % (breg(2 * t + rg, BOV_F), 112 + rg, 2 * t * 544)); cnt += 1
            if cnt % 12 == 0: A("s_waitcnt lgkmcnt(4)")
    A("v_and_b32 v112, 31, v%d\nv_lshlrev_b32 v112, 2, v112\nv_add_u32 v112, %d, v112" % (V_LANE, STAT))
    A("ds_read_b32 v%d, v112\nds_read_b32 v%d, v112 offset:128" % (V_SD, V_SD + 1))
    A("s_waitcnt lgkmcnt(0)")
    A("v_rcp_f32 v%d, v%d\nv_rcp_f32 v%d, v%d\ns_nop 0" % (V_RS, V_SD, V_RS + 1, V_SD + 1))
    A("v_mul_f32 v%d, 0xbfb8aa3b, v%d\nv_mul_f32 v%d, 0xbfb8aa3b, v%d" % (V_C1, V_RS, V_C1 + 1, V_RS + 1))
    A("s_barrier")
    A("v_mov_b32 v96, 0\nv_mov_b32 v97, 0\nv_mov_b32 v98, 0\nv_mov_b32 v99, 0")
    A("s_lshl_b32 s%d, s%d, 10\ns_add_u32 s%d, s%d, %d\nv_add_u32 v100, s%d, v%d" % (S_T1, S_W, S_T1, S_T1, QB, S_T1, V_L16))
    for i in range(9): A("ds_write_b128 v100, v[96:99] offset:%d" % (i * 4096))
    A("v_cmp_gt_u32 vcc, %d, v100\ns_and_saveexec_b64 s[0:1], vcc" % (STAT - 9 * 4096))
    A("ds_write_b128 v100, v[96:99] offset:%d\ns_mov_b64 exec, s[0:1]" % (9 * 4096))
    A("s_waitcnt vmcnt(0)")
    A("v_readfirstlane_b32 s%d, v174" % S_NONCE)
    A("s_mov_b32 s%d, 0" % S_T2)
    A("L_nz:")
    A("s_cmp_lg_u32 s%d, 0\ns_cbranch_scc1 L_nz_ok" % S_NONCE)
    A("s_add_u32 s%d, s%d, 1\ns_cmp_gt_u32 s%d, %d\ns_cbranch_scc1 L_nz_ok" % (S_T2, S_T2, S_T2, SPIN))
    A("v_mov_b32 v21, 0\nbuffer_load_dword v174, v21, s[24:27], 0 offen sc1\ns_waitcnt vmcnt(0)\nv_readfirstlane_b32 s%d, v174\ns_branch L_nz" % S_NONCE)
    A("L_nz_ok:")
    A("s_mov_b32 s24, s%d\ns_mov_b32 s25, s%d\ns_mov_b32 s26, %d" % (S_LO, S_CE, SZ_X))
    A("s_waitcnt lgkmcnt(0)\ns_barrier")
    tr_pair(A, 0, 0, 0, False); tr_pair(A, 0, 0, 1, False)
    stamp(A, 3)

def gen_kv_publish(A):
    h = S_W
    D1 = ACC; D2 = ACC + 16
    AF = TMP; BF = TMP + 16; O1 = TMP + 32
    A("s_and_b32 s%d, s%d, 1" % (S_T0, h))
    A("s_mul_i32 s%d, s%d, 36\ns_lshl_b32 s%d, s%d, 2\ns_sub_u32 s%d, s%d, s%d\ns_add_u32 s%d, s%d, %d" % (S_T1, h, S_T2, S_T0, S_T1, S_T1, S_T2, S_T1, S_T1, QB))
    A("v_lshrrev_b32 v21, 5, v%d\nv_lshlrev_b32 v21, 3, v21" % V_LANE)
    A("v_bfe_u32 v22, v%d, 2, 2\nv_add_u32 v21, v21, v22\nv_mul_u32_u24 v21, %d, v21" % (V_LANE, QS))
    A("v_bfe_u32 v22, v%d, 4, 1\nv_lshl_add_u32 v21, v22, 5, v21" % V_LANE)
    A("v_and_b32 v22, 3, v%d\nv_lshl_add_u32 v21, v22, 3, v21\nv_add_u32 v21, s%d, v21" % (V_LANE, S_T1))
    for ks in range(4):
        for half in range(2):
            off = (16 * ks + 4 * half) * QS
            A("ds_read_b64_tr_b16 v[%d:%d], v21 offset:%d" % (AF + 4 * ks + 2 * half, AF + 4 * ks + 2 * half + 1, off))
            A("ds_read_b64_tr_b16 v[%d:%d], v21 offset:%d" % (BF + 4 * ks + 2 * half, BF + 4 * ks + 2 * half + 1, off + 144))
    for i in range(4): A("v_mov_b32 v%d, 0x3f803f80" % (O1 + i))
    A("s_lshl_b32 s%d, s%d, 1" % (S_T2, S_T0))
    A("v_and_b32 v21, 31, v%d\nv_subrev_u32 v22, s%d, v21" % (V_LANE, S_T2))
    A("v_cmp_eq_u32 vcc, 31, v21\nv_mov_b32 v23, 18\ns_nop 0\nv_cndmask_b32 v22, v22, v23, vcc")
    A("s_mov_b64 s[%d:%d], vcc" % (S_LO, S_LO + 1))
    A("v_cmp_gt_u32 vcc, 18, v22\ns_or_b64 vcc, vcc, s[%d:%d]" % (S_LO, S_LO + 1))
    A("v_lshrrev_b32 v23, 5, v%d\nv_mul_u32_u24 v23, 19, v23\nv_add_u32 v22, v22, v23\nv_lshlrev_b32 v22, 4, v22" % V_LANE)
    A("v_mov_b32 v23, %s\nv_cndmask_b32 v22, v23, v22, vcc" % OOB)
    A("s_lshl_b32 s%d, s%d, 2\ns_add_u32 s%d, s%d, s%d" % (S_T1, S_J, S_T1, S_T1, h))
    A("s_lshl_b32 s%d, s%d, 5\ns_add_u32 s%d, s%d, s%d" % (S_T3, S_T1, S_T3, S_T3, S_R))
    A("s_lshl_b32 s%d, s%d, 11\ns_add_u32 s%d, s%d, %d" % (S_T1, S_T3, S_T1, S_T1, WS_KVP))
    A("s_lshl_b32 s%d, s%d, 2\ns_add_u32 s%d, s%d, %d" % (S_T3, S_T3, S_T3, S_T3, WS_F1))
    A("s_waitcnt lgkmcnt(0)")
    for ks in range(4):
        c1 = "0" if ks == 0 else "v[%d:%d]" % (D1, D1 + 15)
        c2 = "0" if ks == 0 else "v[%d:%d]" % (D2, D2 + 15)
        A("v_mfma_f32_32x32x16_bf16 v[%d:%d], v[%d:%d], v[%d:%d], %s" % (D1, D1 + 15, AF + 4 * ks, AF + 4 * ks + 3, BF + 4 * ks, BF + 4 * ks + 3, c1))
        A("v_mfma_f32_32x32x16_bf16 v[%d:%d], v[%d:%d], v[%d:%d], %s" % (D2, D2 + 15, AF + 4 * ks, AF + 4 * ks + 3, O1, O1 + 3, c2))
    A("s_nop 15\ns_nop 3")
    for q in range(12): A("v_cndmask_b32_e64 v%d, v%d, v%d, s[%d:%d]" % (D1 + q, D1 + q, D2 + q, S_LO, S_LO + 1))
    for quad in range(3):
        A("buffer_store_dwordx4 v[%d:%d], v22, s[20:23], s%d offen offset:%d sc1" % (D1 + 4 * quad, D1 + 4 * quad + 3, S_T1, quad * 608))
    A("s_waitcnt vmcnt(0)")
    set_flag(A, S_T3)

def gen_kv_reduce(A):
    A("s_cmp_ge_u32 s%d, 2\ns_cbranch_scc1 L_red_done" % S_W)
    A("s_lshr_b32 s%d, s%d, 3" % (S_T0, S_R))
    A("s_lshl_b32 s%d, s%d, 2\ns_add_u32 s%d, s%d, s%d" % (S_T1, S_J, S_T1, S_T1, S_T0))
    A("s_lshl_b32 s%d, s%d, 7\ns_add_u32 s%d, s%d, %d" % (S_T3, S_T1, S_T3, S_T3, WS_F1))
    poll_flags(A, "L_p1", S_T3, 32)
    A("s_and_b32 s%d, s%d, 7\ns_lshl_b32 s%d, s%d, 1\ns_add_u32 s%d, s%d, s%d" % (S_T0, S_R, S_T0, S_T0, S_T0, S_T0, S_W))
    A("v_lshrrev_b32 v21, 3, v%d\nv_lshlrev_b32 v21, 11, v21" % V_LANE)
    A("v_and_b32 v22, 7, v%d\nv_lshl_add_u32 v21, v22, 4, v21" % V_LANE)
    A("s_lshl_b32 s%d, s%d, 16\ns_add_u32 s%d, s%d, %d" % (S_T2, S_T1, S_T2, S_T2, WS_KVP))
    A("s_lshl_b32 s%d, s%d, 7\ns_add_u32 s%d, s%d, s%d" % (S_T3, S_T0, S_T2, S_T2, S_T3))
    R = ACC
    for k in range(4):
        A("buffer_load_dwordx4 v[%d:%d], v21, s[20:23], s%d offen sc1" % (R + 4 * k, R + 4 * k + 3, S_T2))
        if k < 3: A("s_add_u32 s%d, s%d, %d" % (S_T2, S_T2, 8 * 2048))
    A("s_waitcnt vmcnt(0)")
    for i in range(4):
        A("v_add_f32 v%d, v%d, v%d\nv_add_f32 v%d, v%d, v%d" % (R + i, R + i, R + 4 + i, R + 8 + i, R + 8 + i, R + 12 + i))
    for i in range(4): A("v_add_f32 v%d, v%d, v%d" % (R + i, R + i, R + 8 + i))
    A("s_nop 1")
    for i in range(4): A("v_add_f32_dpp v%d, v%d, v%d row_ror:8 row_mask:0xf bank_mask:0xf" % (R + i, R + i, R + i))
    for i in range(4): A("v_mov_b32 v%d, v%d" % (R + 4 + i, R + i))
    A("s_nop 1")
    for i in range(4): A("v_permlane16_swap_b32 v%d, v%d" % (R + i, R + 4 + i))
    A("s_nop 1")
    for i in range(4): A("v_add_f32 v%d, v%d, v%d" % (R + i, R + i, R + 4 + i))
    for i in range(4): A("v_mov_b32 v%d, v%d" % (R + 4 + i, R + i))
    A("s_nop 1")
    for i in range(4): A("v_permlane32_swap_b32 v%d, v%d" % (R + i, R + 4 + i))
    A("s_nop 1")
    for i in range(4): A("v_add_f32 v%d, v%d, v%d" % (R + i, R + i, R + 4 + i))
    A("s_lshl_b32 s%d, s%d, 11\ns_lshl_b32 s%d, s%d, 7\ns_add_u32 s%d, s%d, s%d\ns_add_u32 s%d, s%d, %d" % (S_T2, S_T1, S_T3, S_T0, S_T2, S_T2, S_T3, S_T2, S_T2, WS_KVT))
    A("v_cmp_gt_u32 vcc, 8, v%d\ns_and_saveexec_b64 s[0:1], vcc" % V_LANE)
    A("buffer_store_dwordx4 v[%d:%d], v%d, s[20:23], s%d offen sc1" % (R, R + 3, V_L16, S_T2))
    A("s_mov_b64 exec, s[0:1]")
    A("s_lshl_b32 s%d, s%d, 7\ns_lshl_b32 s%d, s%d, 2\ns_add_u32 s%d, s%d, s%d\ns_add_u32 s%d, s%d, %d" % (S_T2, S_T1, S_T3, S_T0, S_T2, S_T2, S_T3, S_T2, S_T2, WS_F2))
    A("s_waitcnt vmcnt(0)")
    set_flag(A, S_T2)
    A("L_red_done:")

def gen_attn_o(A):
    h = S_W
    T = ACC + 16; KV = ACC
    A("s_lshl_b32 s%d, s%d, 2\ns_add_u32 s%d, s%d, s%d" % (S_T1, S_J, S_T1, S_T1, h))
    A("s_lshl_b32 s%d, s%d, 7\ns_add_u32 s%d, s%d, %d" % (S_T3, S_T1, S_T3, S_T3, WS_F2))
    poll_flags(A, "L_p2", S_T3, 16)
    A("s_and_b32 s%d, s%d, 1" % (S_T0, h))
    A("v_and_b32 v21, 31, v%d" % V_LANE)
    A("v_cmp_eq_u32 vcc, 22, v21\nv_mov_b32 v22, 18\ns_nop 0\nv_cndmask_b32 v21, v21, v22, vcc")
    A("v_cmp_ge_u32 vcc, 18, v21\ns_mov_b64 s[%d:%d], vcc" % (S_LO, S_LO + 1))
    A("v_lshrrev_b32 v23, 5, v%d" % V_LANE)
    A("v_lshlrev_b32 v21, 4, v21")
    A("v_mul_u32_u24 v22, 608, v23\nv_add_u32 v22, v21, v22")
    A("v_mov_b32 v24, %s" % OOB)
    A("v_cndmask_b32_e64 v22, v24, v22, s[%d:%d]\nv_cndmask_b32_e64 v21, v24, v21, s[%d:%d]" % (S_LO, S_LO + 1, S_LO, S_LO + 1))
    A("s_lshl_b32 s%d, s%d, 11\ns_add_u32 s%d, s%d, %d" % (S_T2, S_T1, S_T2, S_T2, WS_KVT))
    KV = ACC + 4
    A("buffer_load_dwordx4 v[%d:%d], v22, s[20:23], s%d offen sc1" % (KV, KV + 3, S_T2))
    A("buffer_load_dwordx4 v[%d:%d], v22, s[20:23], s%d offen offset:304 sc1" % (KV + 4, KV + 7, S_T2))
    A("buffer_load_dwordx4 v[%d:%d], v21, s[20:23], s%d offen offset:1216 sc1" % (KV + 8, KV + 11, S_T2))
    A("s_mul_i32 s%d, s%d, 36\ns_lshl_b32 s%d, s%d, 2\ns_sub_u32 s%d, s%d, s%d\ns_add_u32 s%d, s%d, %d" % (S_T1, h, S_T3, S_T0, S_T1, S_T1, S_T3, S_T1, S_T1, QB + 288))
    A("v_and_b32 v22, 31, v%d\nv_mul_u32_u24 v22, %d, v22" % (V_LANE, QS))
    A("v_lshl_add_u32 v22, v23, 4, v22\nv_add_u32 v22, s%d, v22" % S_T1)
    BQ = T
    for rg in range(2):
        for t in range(2):
            b = BQ + 4 * (rg * 2 + t); off = rg * 32 * QS + t * 32
            A("ds_read_b64 v[%d:%d], v22 offset:%d\nds_read_b64 v[%d:%d], v22 offset:%d" % (b, b + 1, off, b + 2, b + 3, off + 8))
    A("v_cmp_eq_u32 vcc, 0, v23\ns_mov_b64 s[%d:%d], vcc" % (S_LO, S_LO + 1))
    A("s_cmp_eq_u32 s%d, 0\ns_cselect_b64 s[%d:%d], 0, vcc" % (S_T0, S_C6, S_C6 + 1))
    A("s_waitcnt vmcnt(0)")
    for jj in range(2): A("v_cndmask_b32_e64 v%d, v%d, 0, s[%d:%d]" % (KV + jj, KV + jj, S_C6, S_C6 + 1))
    for jj in range(2): A("v_cndmask_b32_e64 v%d, 0, v%d, s[%d:%d]" % (KV + 8 + jj, KV + 8 + jj, S_LO, S_LO + 1))
    for jj in range(2, 4): A("v_cndmask_b32_e64 v%d, 0, v%d, s[%d:%d]" % (KV + 8 + jj, KV + 8 + jj, S_C6, S_C6 + 1))
    AK = T + 16
    for p in range(4): A("v_cvt_pk_bf16_f32 v%d, v%d, v%d" % (AK + p, KV + 2 * p, KV + 2 * p + 1))
    for p in range(2): A("v_cvt_pk_bf16_f32 v%d, v%d, v%d" % (AK + 4 + p, KV + 8 + 2 * p, KV + 9 + 2 * p))
    A("v_mov_b32 v%d, 0\nv_mov_b32 v%d, 0" % (AK + 6, AK + 7))
    A("s_waitcnt lgkmcnt(0)\ns_nop 1")
    DO = EPI
    for rg in range(2): A("v_mfma_f32_32x32x16_bf16 v[%d:%d], v[%d:%d], v[%d:%d], 0" % (DO + 16 * rg, DO + 16 * rg + 15, AK, AK + 3, BQ + 8 * rg, BQ + 8 * rg + 3))
    for rg in range(2): A("v_mfma_f32_32x32x16_bf16 v[%d:%d], v[%d:%d], v[%d:%d], v[%d:%d]" % (DO + 16 * rg, DO + 16 * rg + 15, AK + 4, AK + 7, BQ + 8 * rg + 4, BQ + 8 * rg + 7, DO + 16 * rg, DO + 16 * rg + 15))
    A("s_mul_i32 s%d, s%d, 36\ns_add_u32 s%d, s%d, %d" % (S_T1, h, S_T1, S_T1, OB))
    A("v_and_b32 v22, 31, v%d\nv_mul_u32_u24 v22, %d, v22" % (V_LANE, OS))
    A("v_lshl_add_u32 v22, v23, 3, v22\nv_add_u32 v22, s%d, v22" % S_T1)
    A("s_nop 15")
    for rg in range(2):
        d = DO + 16 * rg
        A("v_add_f32 v%d, 0x358637bd, v%d\nv_rcp_f32 v%d, v%d\ns_nop 0" % (T + 24, d + 10, T + 24, T + 24))
        for q in range(10): A("v_mul_f32 v%d, v%d, v%d" % (d + q, d + q, T + 24))
        for p in range(5): A("v_cvt_pk_bf16_f32 v%d, v%d, v%d" % (T + 26 + p, d + 2 * p, d + 2 * p + 1))
        for p in range(4): A("ds_write_b32 v22, v%d offset:%d" % (T + 26 + p, rg * 32 * OS + (p // 2) * 16 + (p % 2) * 4))
        A("s_mov_b64 exec, s[%d:%d]\nds_write_b32 v22, v%d offset:%d\ns_mov_b64 exec, -1" % (S_LO, S_LO + 1, T + 30, rg * 32 * OS + 32))

def xchg_write(A, w, base_expr_sreg):
    A("v_add_u32 v21, s%d, v%d" % (S_RING, V_L16))
    idx = 0
    for ai in range(4):
        if ai == w: continue
        for qd in range(4):
            b = ACC + 16 * ai + 4 * qd
            A("ds_write_b128 v21, v[%d:%d] offset:%d" % (b, b + 3, idx * 4096 + qd * 1024))
        idx += 1
def xchg_read_sum(A, w, T):
    A("v_add_u32 v21, %d, v%d" % (RING, V_L16))
    n = 0
    for src in range(4):
        if src == w: continue
        idx = w if w < src else w - 1
        for qd in range(4):
            b = T + 16 * n + 4 * qd
            A("ds_read_b128 v[%d:%d], v21 offset:%d" % (b, b + 3, src * RING_W + idx * 4096 + qd * 1024))
        n += 1
    A("s_waitcnt lgkmcnt(8)")
    for i in range(16): A("v_add_f32 v%d, v%d, v%d" % (ACC + 16 * w + i, ACC + 16 * w + i, T + i))
    A("s_waitcnt lgkmcnt(4)")
    for i in range(16): A("v_add_f32 v%d, v%d, v%d" % (ACC + 16 * w + i, ACC + 16 * w + i, T + 16 + i))
    A("s_waitcnt lgkmcnt(0)")
    for i in range(16): A("v_add_f32 v%d, v%d, v%d" % (ACC + 16 * w + i, ACC + 16 * w + i, T + 32 + i))

def wave_switch(A, prefix):
    A("s_cmp_eq_u32 s%d, 1\ns_cbranch_scc1 %s1" % (S_W, prefix))
    A("s_cmp_eq_u32 s%d, 2\ns_cbranch_scc1 %s2" % (S_W, prefix))
    A("s_cmp_eq_u32 s%d, 3\ns_cbranch_scc1 %s3" % (S_W, prefix))

def gen_F(A):
    full_F(A, {})
    stamp(A, 4)
    A("s_lshl_b32 s%d, s%d, 3" % (S_U8, S_W))
    A("v_and_b32 v21, 31, v%d\nv_mul_u32_u24 v21, %d, v21" % (V_LANE, QS))
    A("v_lshrrev_b32 v22, 5, v%d\nv_lshl_add_u32 v21, v22, 3, v21\nv_add_u32 v%d, %d, v21" % (V_LANE, V_EP, QB))
    advance(A)
    emit_tab(A, "F", TABC, range(D, 36), 6)
    A("s_add_u32 s%d, s%d, 4" % (S_T3, S_W))
    next_F(A, S_T3)
    full_F(A, place(q_ops(), 1, 33))
    stamp(A, 5)
    A("s_lshl_b32 s%d, s%d, 13\ns_add_u32 s%d, s%d, %d\nv_add_u32 v%d, s%d, v%d" % (S_T0, S_W, S_T0, S_T0, HB, V_EP, S_T0, V_L16))
    advance(A)
    A("s_mov_b32 s%d, 8" % S_T3)
    next_F(A, S_T3, kq=True)
    A("s_waitcnt lgkmcnt(0)\ns_barrier")
    gen_kv_publish(A)
    stamp(A, 6)
    full_F(A, place(silu_ops(), 1, 33))
    stamp(A, 7)
    A("s_lshl_b32 s%d, s%d, 13\ns_add_u32 s%d, s%d, %d\nv_add_u32 v%d, s%d, v%d" % (S_T0, S_W, S_T0, S_T0, HB + 4 * 8192, V_EP, S_T0, V_L16))
    advance(A)
    wave_switch(A, "L_sf")
    for w in range(4):
        A("L_sf%d:" % w)
        short_F(A, w, place(silu_ops(), 1, 8))
        A("s_nop 15")
        xchg_write(A, w, None)
        A("s_waitcnt lgkmcnt(0)\ns_barrier")
        xchg_read_sum(A, w, EPI)
        tile, rg = w >> 1, w & 1
        A("v_add_u32 v21, %d, v%d" % (HB + 8 * 8192 + tile * 4096 + rg * 1024, V_L16))
        for s in range(2):
            P = TMP + 16 + 4 * s
            for gq in range(2):
                emit_ops(A, silu_group(ACC + 16 * w + 8 * s + 4 * gq, rg, TMP + 4 * (s * 2 + gq), P + 2 * gq))
            A("ds_write_b128 v21, v[%d:%d] offset:%d" % (P, P + 3, s * 2048))
        if w < 3: A("s_branch L_sf_done")
    A("L_sf_done:")
    stamp(A, 8)

def unit_of(A, dst, k):
    A("s_add_u32 s%d, s%d, s%d\ns_add_u32 s%d, s%d, %d\ns_and_b32 s%d, s%d, 7" % (dst, S_J, S_W, dst, dst, k, dst, dst))
    if k == 0:
        A("s_cmp_eq_u32 s%d, 0\ns_cselect_b32 s%d, 8, s%d" % (S_W, dst, dst))

def set_unit_store(A, s_u):
    A("s_mul_i32 s%d, s%d, 9\ns_add_u32 s%d, s%d, s%d\ns_lshl_b32 s%d, s%d, 13" % (S_UNIT, S_WG, S_UNIT, S_UNIT, s_u, S_UNIT, S_UNIT))
    A("s_lshl_b32 s%d, s%d, 4\ns_add_u32 s%d, s%d, s%d\ns_lshl_b32 s%d, s%d, 5" % (S_RHO, S_R, S_RHO, S_RHO, s_u, S_RHO, S_RHO))
    A("s_lshl_b32 s%d, s%d, 2\ns_add_u32 s%d, s%d, s%d\ns_add_u32 s%d, s%d, %d" % (S_T1, S_J, S_RHO, S_RHO, S_T1, S_RHO, S_RHO, WS_FP))

def flag_ops():
    return [Op("v_mov_b32 v21, s%d\nv_mov_b32 v22, 0\nv_cmp_eq_u32 vcc, 0, v%d\ns_and_saveexec_b64 s[0:1], vcc\nbuffer_store_dword v21, v22, s[20:23], s%d offen sc1\ns_mov_b64 exec, s[0:1]" % (S_NONCE, V_LANE, S_RHO), "vmem", cost=3)]

def gen_P(A):
    A("s_waitcnt lgkmcnt(0)\ns_barrier")
    stamp(A, 9)
    unit_of(A, S_T3, 0)
    next_P(A, S_T3)
    issue_first(A)
    advance(A)
    emit_tab(A, "P", TABC, range(D, 41), 7)
    gen_kv_reduce(A)
    stamp(A, 10)
    A("v_add_u32 v21, %d, v%d\nv_add_u32 v22, %d, v%d" % (HB, V_L16, HB + 65536, V_L16))
    cnt = 0
    for kk in range(36):
        for rg in range(2):
            off = (kk * 2 + rg) * 1024
            if off < 65536: A("ds_read_b128 %s, v21 offset:%d" % (breg(2 * kk + rg, BOV_P), off))
            else: A("ds_read_b128 %s, v22 offset:%d" % (breg(2 * kk + rg, BOV_P), off - 65536))
            cnt += 1
            if cnt % 12 == 0: A("s_waitcnt lgkmcnt(4)")
    stamp(A, 11)
    gen_attn_o(A)
    A("s_waitcnt lgkmcnt(0)\ns_barrier")
    stamp(A, 12)
    A("v_and_b32 v21, 31, v%d\nv_mul_u32_u24 v21, %d, v21" % (V_LANE, OS))
    A("v_lshrrev_b32 v22, 5, v%d\nv_lshl_add_u32 v21, v22, 4, v21\nv_add_u32 v21, %d, v21" % (V_LANE, OB))
    for u in range(5):
        for rg in range(2): A("ds_read_b128 %s, v21 offset:%d" % (breg(2 * (36 + u) + rg, BOV_P), rg * 32 * OS + 32 * u))
    unit_of(A, S_T3, 4)
    next_P(A, S_T3)
    A("s_waitcnt vmcnt(0) lgkmcnt(0)")
    tr_pair(A, 0, 0, 0, True); tr_pair(A, 0, 0, 1, True)
    stamp(A, 13)
    full_P(A, {}, False)
    stamp(A, 14)
    unit_of(A, S_T3, 0)
    set_unit_store(A, S_T3)
    advance(A)
    next_P(A, S_J)
    A("s_mul_i32 s%d, s%d, %d" % (S_T1, S_W, 10 * 16 * 1152))
    A("v_add_u32 v%d, s%d, v%d\nv_add_u32 v%d, s%d, v%d" % (V_NA, S_T1, V_NA, V_NB, S_T1, V_NB))
    pl = place(store_ops(), 1, 10)
    pl.setdefault((20, 3), []).extend(flag_ops())
    full_P(A, pl, True)
    stamp(A, 15)
    unit_of(A, S_T3, 4)
    set_unit_store(A, S_T3)
    advance(A)
    wave_switch(A, "L_sp")
    for w in range(4):
        A("L_sp%d:" % w)
        k0, k1 = P_RANGE[w]
        if w < 3:
            emit_tab(A, "P", TABC, range(D, k1 - k0), 7)
        else:
            A("s_mul_i32 s%d, s%d, %d" % (S_T1, S_W, 10 * 16 * 1152))
            A("v_subrev_u32 v%d, s%d, v%d\nv_subrev_u32 v%d, s%d, v%d" % (V_CA, S_T1, V_CA, V_CB, S_T1, V_CB))
            for f in range(D, 11):
                c = (30 + f - 36) * 16 * 1152 - slot_info(f % 7)[1]
                assert c >= 0
                A("s_add_u32 s%d, s%d, %d" % (TABC + f, S_WOB, c))
        short_P(A, w, place(store_ops(), 1, 6))
        A("s_waitcnt vmcnt(0)")
        emit_ops(A, flag_ops())
        A("s_nop 15")
        xchg_write(A, w, None)
        A("s_waitcnt lgkmcnt(0)\ns_barrier")
        xchg_read_sum(A, w, EPI)
        gen_final(A, w)
        if w < 3: A("s_branch L_fin")
    A("L_fin:")
    stamp(A, 17)
    if STAMPS:
        A("s_lshl_b32 s%d, s%d, 2\ns_add_u32 s%d, s%d, s%d\ns_lshl_b32 s%d, s%d, 8\ns_add_u32 s%d, s%d, %d" % (S_T0, S_WG, S_T0, S_T0, S_W, S_T0, S_T0, S_T0, S_T0, WS_DBG))
        A("v_lshlrev_b32 v21, 2, v%d\nbuffer_store_dword v0, v21, s[20:23], s%d offen\ns_waitcnt vmcnt(0)" % (V_LANE, S_T0))
    A("L_end:\ns_endpgm")

def gen_final(A, w):
    tile, rg = w >> 1, w & 1
    AC = ACC + 16 * w
    L = EPI
    A("s_lshl_b32 s%d, s%d, 4\ns_add_u32 s%d, s%d, s%d\ns_lshl_b32 s%d, s%d, 5\ns_add_u32 s%d, s%d, %d" % (S_T3, S_R, S_T3, S_T3, S_J, S_T3, S_T3, S_T3, S_T3, WS_FP))
    lab = "L_p3_%d" % w
    A("v_lshlrev_b32 v21, 2, v%d" % V_LANE)
    A("v_cmp_gt_u32 vcc, 8, v%d\ns_mov_b64 s[0:1], vcc" % V_LANE)
    A("v_cmp_ne_u32 vcc, s%d, v%d\ns_and_b64 s[0:1], s[0:1], vcc" % (S_J, V_LANE))
    A("s_mov_b32 s%d, 0" % S_T2)
    A("%s:" % lab)
    A("buffer_load_dword v22, v21, s[20:23], s%d offen sc1" % S_T3)
    A("s_add_u32 s%d, s%d, 1\ns_waitcnt vmcnt(0)" % (S_T2, S_T2))
    A("v_cmp_ne_u32 vcc, s%d, v22\ns_and_b64 vcc, vcc, s[0:1]\ns_cbranch_vccz %s_ok" % (S_NONCE, lab))
    A("s_cmp_gt_u32 s%d, %d\ns_cbranch_scc1 %s_ok\ns_branch %s" % (S_T2, SPIN, lab, lab))
    A("%s_ok:" % lab)
    stamp(A, 16)
    for i in range(7):
        A("s_add_u32 s%d, s%d, %d\ns_and_b32 s%d, s%d, 7" % (S_T0, S_J, 1 + i, S_T0, S_T0))
        A("s_lshl_b32 s%d, s%d, 3\ns_add_u32 s%d, s%d, s%d\ns_mul_i32 s%d, s%d, 9\ns_add_u32 s%d, s%d, s%d\ns_lshl_b32 s%d, s%d, 13" % (S_T1, S_R, S_T0, S_T0, S_T1, S_T0, S_T0, S_T0, S_T0, S_J, S_T0, S_T0))
        A("s_add_u32 s%d, s%d, %d" % (S_T0, S_T0, w * 2048))
        for half in range(2):
            A("buffer_load_dwordx4 v[%d:%d], v%d, s[20:23], s%d offen offset:%d sc1" % (L + 8 * i + 4 * half, L + 8 * i + 4 * half + 3, V_L16, S_T0, half * 1024))
    A("s_lshl_b32 s%d, s%d, 6\ns_add_u32 s%d, s%d, %d\ns_mul_i32 s%d, s%d, 1152" % (S_T0, S_R, S_T0, S_T0, 32 * rg, S_T0, S_T0))
    A("s_lshl_b32 s%d, s%d, 7\ns_add_u32 s%d, s%d, s%d\ns_add_u32 s%d, s%d, %d" % (S_T1, S_J, S_T0, S_T0, S_T1, S_T0, S_T0, 64 * tile))
    A("v_and_b32 v21, 31, v%d\nv_mul_u32_u24 v21, 1152, v21\nv_lshrrev_b32 v22, 5, v%d\nv_lshl_add_u32 v21, v22, 4, v21" % (V_LANE, V_LANE))
    X = TMP
    for half in range(2):
        A("buffer_load_dwordx4 v[%d:%d], v21, s[8:11], s%d offen offset:%d" % (X + 4 * half, X + 4 * half + 3, S_T0, 32 * half))
    for i in range(7):
        A("s_waitcnt vmcnt(%d)" % (2 + 2 * (6 - i)))
        for p in range(8):
            r = L + 8 * i + p
            A("v_lshlrev_b32 v22, 16, v%d\nv_and_b32 v23, 0xffff0000, v%d" % (r, r))
            A("v_add_f32 v%d, v%d, v22\nv_add_f32 v%d, v%d, v23" % (AC + 2 * p, AC + 2 * p, AC + 2 * p + 1, AC + 2 * p + 1))
    out_store(A, AC, X, 21, S_T0, 2)
    if w == 3:
        gen_unit8(A)

def out_store(A, AC, X, vaddr, soff, nhalf):
    A("s_nop 1")
    for half in range(nhalf):
        for i in range(4): A("v_permlane32_swap_b32 v%d, v%d" % (AC + 8 * half + i, AC + 8 * half + 4 + i))
    A("s_waitcnt vmcnt(0)\ns_nop 1")
    for half in range(nhalf):
        for p in range(4):
            r = X + 4 * half + p; a = AC + 8 * half + 2 * p
            A("v_lshlrev_b32 v22, 16, v%d\nv_and_b32 v23, 0xffff0000, v%d" % (r, r))
            A("v_add_f32 v%d, v%d, v22\nv_add_f32 v%d, v%d, v23" % (a, a, a + 1, a + 1))
        for p in range(4): A("v_cvt_pk_bf16_f32 v%d, v%d, v%d" % (X + 4 * half + p, AC + 8 * half + 2 * p, AC + 8 * half + 2 * p + 1))
        A("buffer_store_dwordx4 v[%d:%d], v%d, s[24:27], s%d offen offset:%d" % (X + 4 * half, X + 4 * half + 3, vaddr, soff, 32 * half))

def gen_unit8(A):
    L = EPI; AC = ACC
    A("s_lshl_b32 s%d, s%d, 4\ns_add_u32 s%d, s%d, 8\ns_lshl_b32 s%d, s%d, 5\ns_add_u32 s%d, s%d, %d" % (S_T3, S_R, S_T3, S_T3, S_T3, S_T3, S_T3, S_T3, WS_FP))
    poll_flags(A, "L_p4", S_T3, 8)
    for i in range(8):
        A("s_lshl_b32 s%d, s%d, 3\ns_add_u32 s%d, s%d, %d\ns_mul_i32 s%d, s%d, 9\ns_add_u32 s%d, s%d, 8\ns_lshl_b32 s%d, s%d, 13" % (S_T0, S_R, S_T0, S_T0, i, S_T0, S_T0, S_T0, S_T0, S_T0, S_T0))
        A("s_lshl_b32 s%d, s%d, 10\ns_add_u32 s%d, s%d, s%d" % (S_T1, S_J, S_T0, S_T0, S_T1))
        A("buffer_load_dwordx4 v[%d:%d], v%d, s[20:23], s%d offen sc1" % (L + 4 * i, L + 4 * i + 3, V_L16, S_T0))
    A("s_bfe_u32 s%d, s%d, 0x10001\ns_lshl_b32 s%d, s%d, 5" % (S_T1, S_J, S_T1, S_T1))
    A("s_lshl_b32 s%d, s%d, 6\ns_add_u32 s%d, s%d, s%d\ns_mul_i32 s%d, s%d, 1152" % (S_T0, S_R, S_T0, S_T0, S_T1, S_T0, S_T0))
    A("s_lshr_b32 s%d, s%d, 2\ns_lshl_b32 s%d, s%d, 6\ns_add_u32 s%d, s%d, s%d" % (S_T1, S_J, S_T1, S_T1, S_T0, S_T0, S_T1))
    A("s_and_b32 s%d, s%d, 1\ns_lshl_b32 s%d, s%d, 5\ns_add_u32 s%d, s%d, s%d\ns_add_u32 s%d, s%d, 1024" % (S_T1, S_J, S_T1, S_T1, S_T0, S_T0, S_T1, S_T0, S_T0))
    X = TMP + 8
    A("v_and_b32 v21, 31, v%d\nv_mul_u32_u24 v21, 1152, v21\nv_lshrrev_b32 v22, 5, v%d\nv_lshl_add_u32 v21, v22, 4, v21" % (V_LANE, V_LANE))
    A("buffer_load_dwordx4 v[%d:%d], v21, s[8:11], s%d offen" % (X, X + 3, S_T0))
    A("s_waitcnt vmcnt(1)")
    for p in range(4):
        A("v_lshlrev_b32 v%d, 16, v%d\nv_and_b32 v%d, 0xffff0000, v%d" % (AC + 2 * p, L + p, AC + 2 * p + 1, L + p))
    for i in range(1, 8):
        for p in range(4):
            r = L + 4 * i + p
            A("v_lshlrev_b32 v22, 16, v%d\nv_and_b32 v23, 0xffff0000, v%d" % (r, r))
            A("v_add_f32 v%d, v%d, v22\nv_add_f32 v%d, v%d, v23" % (AC + 2 * p, AC + 2 * p, AC + 2 * p + 1, AC + 2 * p + 1))
    out_store(A, AC, X, 21, S_T0, 1)

def kd(name, vgpr, accum, sgpr=102):
    return """.amdhsa_kernel %s
  .amdhsa_next_free_vgpr %d
  .amdhsa_next_free_sgpr %d
  .amdhsa_accum_offset %d
  .amdhsa_group_segment_fixed_size 0
  .amdhsa_kernarg_size 72
  .amdhsa_user_sgpr_count 2
  .amdhsa_user_sgpr_kernarg_segment_ptr 1
  .amdhsa_system_sgpr_workgroup_id_x 1
.end_amdhsa_kernel""" % (name, vgpr, sgpr, accum)

def main(out):
    hdr = open("cdna_kernels/%s.s.ref" % KNAME).read().split("; Override launch geometry")[0]
    A = Asm()
    A(hdr.rstrip())
    A("; @launch grid=(256,1,1) block=(256,1,1) lds=%d" % LDS_TOTAL)
    A('.amdgcn_target "amdgcn-amd-amdhsa--gfx950"')
    gen_prologue(A)
    gen_F(A)
    gen_P(A)
    A('.section .rodata,"a"\n.p2align 6')
    A(kd(KNAME + "_kernel", 512, 256))
    open(out, "w").write(A.text())

if __name__ == "__main__":
    if len(sys.argv) > 2 and sys.argv[2] == "stamps": STAMPS = True
    main(sys.argv[1] if len(sys.argv) > 1 else "cdna_kernels/%s.s" % KNAME)
```

```python
import sys, struct
KNAME = "parallel_sum__linear_attn_block__dense_activation_silu__prompt"
def f2u(x): return struct.unpack("<I", struct.pack("<f", x))[0]

class Op:
    def __init__(self, text, kind="valu", cost=None):
        self.text = text; self.kind = kind
        n = text.count("\n") + 1
        if cost is not None: self.cost = cost * 4
        elif kind == "trans": self.cost = 8
        elif kind == "lds": self.cost = 12 if "b128" in text else 6
        elif kind == "vmem": self.cost = 8
        else: self.cost = 4 * n
class Asm:
    def __init__(self): self.l = []
    def __call__(self, s): self.l.append(s)
    def text(self): return "\n".join(self.l) + "\n"

RING = 0; RING_W = 12288
HB = 49152
QB = 122880; QS = 456
OB = 152064; OS = 176
STAT = 163328
LDS_TOTAL = 163840
V_LANE = 1
V_CA, V_CB, V_NA, V_NB = 2, 3, 4, 5
V_TA, V_TB, V_PA, V_PB = 6, 7, 8, 9
V_C1, V_SD, V_RS = 10, 12, 14
V_EP = 16; V_L16 = 17
V_ROW8, V_SC16, V_SC = 18, 19, 20
VT = 21
ACC = 24; EPI = 88; AREG = 152; TMP = 176
BOV_F = 224; BOV_P = 184
HOLD = TMP + 16
OJ = 216
HOLDP = [232, 236, 240, 244, 248, 252, 176, 180]
S_WOB = 2; S_R, S_J, S_W, S_WG, S_W2B = 3, 4, 5, 6, 7
SRD_X, SRD_C, SRD_N, SRD_WS, SRD_DBG, SRD_WO = 8, 12, 16, 20, 24, 28
P_QKV, P_W1, P_W2 = 32, 34, 36
S_RING = 38; S_NONCE = 39
TABC = 40; TABN = 81; S_M0 = 87
S_RHO = 91
S_T0, S_T1, S_T2, S_T3 = 92, 93, 94, 95
S_LO, S_CE, S_C6, S_GOFF = 96, 97, 98, 99
S_U8 = 100; S_UNIT = 101
D = 6
SZ_X = 2048 * 1152; SZ_QKV = 576 * 3456; SZ_W1 = 576 * 9216; SZ_W2 = 4608 * 1152; SZ_WO = 576 * 1152
WS_PART = 0
WS_KVP = 19 << 20
WS_KVT = 21 << 20
WS_F1 = WS_KVT + (1 << 16)
WS_F2 = WS_F1 + 4096
WS_FP = WS_F2 + 4096
WS_DBG = 22 << 20
WS_SIZE = 256 << 20
OOB = "0x7f000000"
STAMPS = False
SPIN = 20000

def breg(bi, bov):
    if bi < 64: return "a[%d:%d]" % (4 * bi, 4 * bi + 3)
    return "v[%d:%d]" % (bov + 4 * (bi - 64), bov + 4 * (bi - 64) + 3)
def bregP(kk, rg):
    if kk < 36: return breg(2 * kk + rg, BOV_P)
    b = OJ + 8 * ((kk - 36) % 2) + 4 * rg
    return "v[%d:%d]" % (b, b + 3)
def ojit_ops(u):
    return [Op("ds_read_b128 %s, v%d offset:%d" % (bregP(36 + u, rg), V_EP, rg * 32 * OS + 32 * u), "lds", cost=1) for rg in range(2)]
def aset_seq(n):
    return [i % 2 for i in range(n)] if n % 2 == 0 else [i % 2 for i in range(n - 1)] + [2]
def slot_info(slot, exact=False):
    if slot < 6:
        if exact: return ("s_add_u32 m0, s%d, %d" % (S_RING, slot * 2048), 0, slot * 2048)
        return ("s_mov_b32 m0, s%d" % (S_M0 + slot // 2), (slot % 2) * 2048, slot * 2048)
    return ("s_mov_b32 m0, s%d" % (S_M0 + 3), 0, HB - RING)
def spread(ops, nslots):
    total = sum(o.cost for o in ops)
    per = total / nslots if nslots else 0
    slots = [[] for _ in range(nslots)]
    acc = 0.0; si = 0
    for o in ops:
        while si < nslots - 1 and acc >= per * (si + 1) - 1e-9: si += 1
        slots[si].append(o); acc += o.cost
    return slots
def stamp(A, k):
    if not STAMPS: return
    A("s_memrealtime s[%d:%d]\ns_waitcnt lgkmcnt(0)\nv_writelane_b32 v0, s%d, %d" % (S_T0, S_T1, S_T0, k))
    A("s_memtime s[%d:%d]\ns_waitcnt lgkmcnt(0)\nv_writelane_b32 v0, s%d, %d" % (S_T0, S_T1, S_T0, k + 32))

def tr_pair(A, slot, aset, which, perm):
    timm = slot_info(slot)[2]
    va = (V_PA, V_PB)[which] if perm else (V_TA, V_TB)[which]
    off2 = 1024 if perm else 512
    ar = AREG + 8 * aset + 4 * which
    A("ds_read_b64_tr_b16 v[%d:%d], v%d offset:%d" % (ar, ar + 1, va, timm))
    A("ds_read_b64_tr_b16 v[%d:%d], v%d offset:%d" % (ar + 2, ar + 3, va, timm + off2))

def tr_one(A, slot, aset, which, perm, part):
    timm = slot_info(slot)[2]
    va = (V_PA, V_PB)[which] if perm else (V_TA, V_TB)[which]
    off2 = 1024 if perm else 512
    ar = AREG + 8 * aset + 4 * which + 2 * part
    A("ds_read_b64_tr_b16 v[%d:%d], v%d offset:%d" % (ar, ar + 1, va, timm + off2 * part))

def dma_instrs(ctx, tabreg, slot, exact=False):
    m0s, imm, _ = slot_info(slot, exact)
    srd = {"C": SRD_C, "N": SRD_N, "WO": SRD_WO}[ctx]
    va, vb = (V_NA, V_NB) if ctx == "N" else (V_CA, V_CB)
    i1 = "buffer_load_dwordx4 v%d, s[%d:%d], s%d offen offset:%d lds" % (va, srd, srd + 3, tabreg, imm)
    i2 = "buffer_load_dwordx4 v%d, s[%d:%d], s%d offen offset:%d lds" % (vb, srd, srd + 3, tabreg, imm + 1024)
    return m0s, i1, i2

class Body:
    pass

def emit_unit(A, steps, dma_plan, pre_tags, nxt, placed, to_epi=True, aset=None, LA=1):
    n = len(steps)
    vmq = [t for t in pre_tags for _ in range(2)]
    lgq = [("t", f) for f in range(LA) for _ in range(4)]
    last_m0 = None
    for t in range(n):
        ft = t + LA
        if ft < n: want = ("d", ft); nx = (steps[ft]["slot"], aset[ft], steps[ft]["perm"])
        elif nxt is not None: want = ("n", ft - n); d = nxt[ft - n]; nx = (d["slot"], d["aset"], d["perm"])
        else: want = None; nx = None
        vmn = None
        if want is not None and want in vmq:
            idx = max(i for i, e in enumerate(vmq) if e == want)
            vmn = len(vmq) - 1 - idx; vmq = vmq[idx + 1:]
        idx = max(i for i, e in enumerate(lgq) if e == ("t", t))
        lgn = len(lgq) - 1 - idx; lgq = lgq[idx + 1:]
        assert lgn < 16 and (vmn is None or vmn < 64)
        if vmn is None: A("s_waitcnt lgkmcnt(%d)" % lgn)
        else: A("s_waitcnt vmcnt(%d) lgkmcnt(%d)" % (vmn, lgn))
        dp = dma_plan[t]
        if dp is not None: m0s, i1, i2 = dma_instrs(dp[0], dp[1], dp[2], dp[3])
        def put(k):
            for o in placed.get((t, k), []):
                A(o.text)
                if o.kind == "lds": lgq.append(("x", 0))
                if o.kind == "vmem": vmq.append(("x", 0))
        def mfma(tile, rg):
            ai = tile * 2 + rg
            d = (EPI if (t == n - 1 and to_epi) else ACC) + 16 * ai
            c = "0" if t == 0 else "v[%d:%d]" % (ACC + 16 * ai, ACC + 16 * ai + 15)
            ar = AREG + 8 * aset[t] + 4 * tile
            A("v_mfma_f32_32x32x16_bf16 v[%d:%d], v[%d:%d], %s, %s" % (d, d + 15, ar, ar + 3, steps[t]["b"][rg], c))
        if nx: tr_pair(A, nx[0], nx[1], 0, nx[2]); lgq += [("t", ft)] * 2
        mfma(0, 0)
        if dp is not None and last_m0 != m0s: A(m0s); last_m0 = m0s
        if nx: tr_one(A, nx[0], nx[1], 1, nx[2], 0); lgq.append(("t", ft))
        if dp is not None: A(i1); vmq.append(dp[4])
        put(0)
        mfma(0, 1)
        if nx: tr_one(A, nx[0], nx[1], 1, nx[2], 1); lgq.append(("t", ft))
        if dp is not None: A(i2); vmq.append(dp[4])
        put(1)
        mfma(1, 0)
        put(2)
        mfma(1, 1)
        put(3)

LAF = 1
FREE = [8, 12, 24, 12]
def place(ops, t0, t1, placed=None):
    placed = {} if placed is None else placed
    gaps = [(t, k) for t in range(t0, t1 + 1) for k in range(4)]
    total = sum(o.cost for o in ops)
    free = sum(FREE[k] for _, k in gaps)
    phi = total / free
    i = 0; carry = 0.0
    for gi, (t, k) in enumerate(gaps):
        budget = phi * FREE[k] + carry
        while i < len(ops) and (ops[i].cost / 2 <= budget or gi == len(gaps) - 1):
            placed.setdefault((t, k), []).append(ops[i]); budget -= ops[i].cost; i += 1
        carry = budget
    assert i == len(ops)
    return placed

def full_F(A, placed, next_kind="F"):
    steps = [dict(b=(breg(2 * t, BOV_F), breg(2 * t + 1, BOV_F)), perm=False, slot=t % 6) for t in range(36)]
    plan = []
    for t in range(36):
        f = t + D
        if f < 36: plan.append(("C", TABC + f, f % 6, False, ("d", f)))
        else: plan.append(("N", TABN + f - 36, (f - 36) % 6, False, ("n", f - 36)))
    na = 3 if LAF == 2 else 2
    emit_unit(A, steps, plan, [("d", f) for f in range(LAF, D)], [dict(slot=i, aset=i, perm=False) for i in range(LAF)], placed,
              aset=[t % na for t in range(36)], LA=LAF)

def short_F(A, w, placed):
    steps = [dict(b=(breg(2 * (9 * w + t), BOV_F), breg(2 * (9 * w + t) + 1, BOV_F)), perm=False, slot=t % 6) for t in range(9)]
    plan = [("C", TABC + t + D, (t + D) % 6, False, ("d", t + D)) if t + D < 9 else None for t in range(9)]
    na = 3 if LAF == 2 else 2
    emit_unit(A, steps, plan, [("d", f) for f in range(LAF, D)], None, placed, to_epi=False, aset=[t % na for t in range(9)], LA=LAF)

def full_P(A, placed):
    steps = [dict(b=(bregP(t, 0), bregP(t, 1)), perm=(t < 36), slot=t % 7) for t in range(41)]
    plan = []
    for t in range(41):
        f = t + D
        if f < 41: plan.append(("WO" if f >= 36 else "C", TABC + f, f % 7, f == 36, ("d", f)))
        else: plan.append(("N", TABN + f - 41, f - 41, False, ("n", f - 41)))
    for u in range(5):
        placed.setdefault((35 + u, 0), [])[:0] = ojit_ops(u)
    emit_unit(A, steps, plan, [("d", f) for f in range(1, D)], [dict(slot=0, aset=0, perm=True)], placed, aset=aset_seq(41), LA=1)

P_RANGE = [(0, 10), (10, 20), (20, 30), (30, 41)]
def short_P(A, w, placed):
    k0, k1 = P_RANGE[w]
    n = k1 - k0
    steps = [dict(b=(bregP(k0 + t, 0), bregP(k0 + t, 1)), perm=(k0 + t < 36), slot=t % 7) for t in range(n)]
    plan = []
    for t in range(n):
        f = t + D
        if f < n: plan.append(("WO" if k0 + f >= 36 else "C", TABC + f, f % 7, False, ("d", f)))
        else: plan.append(None)
    if w == 3:
        for u in range(5): placed.setdefault((5 + u, 0), [])[:0] = ojit_ops(u)
    emit_unit(A, steps, plan, [("d", f) for f in range(1, min(D, n))], None, placed, to_epi=False, aset=[t % 2 for t in range(n)], LA=1)

def first_tr_F(A):
    for f in range(LAF):
        tr_pair(A, f, f, 0, False); tr_pair(A, f, f, 1, False)


TAB = 40
S_B2 = 33
OT = [81, 82, 83, 84, 85, 86, 87, 88, 89, 90, 32]
V_PA2, V_PB2 = 14, 15
V_TA2, V_TB2 = 10, 11
V_HR = 10
def kk_of(s): return s if s < 16 else (s + 16 if s < 20 else (s - 4 if s < 36 else s))
def s_of(kk): return kk if kk < 16 else (kk - 16 if kk >= 32 else kk + 4)
def pslot(slot):
    if slot < 6: return ("s_add_u32 m0, s%d, %d" % (S_RING, slot * 2048), 0, slot * 2048)
    off = (slot - 6) * 2048 if slot < 10 else 32768 + (slot - 10) * 2048
    return ("s_add_u32 m0, s%d, %d" % (S_B2, off), 1, off)
def pfrag(slot, perm):
    _, bs, imm = pslot(slot)
    if perm: va = (V_PA, V_PB) if bs == 0 else (V_PA2, V_PB2)
    else: va = (V_TA, V_TB) if bs == 0 else (V_TA2, V_TB2)
    return dict(va=va, imm=imm, off2=1024 if perm else 512)
def pdma(srd, va, vb, sreg, slot, tag):
    m0s = pslot(slot)[0]
    return (m0s, "buffer_load_dwordx4 v%d, s[%d:%d], s%d offen lds" % (va, srd, srd + 3, sreg),
            "buffer_load_dwordx4 v%d, s[%d:%d], s%d offen offset:1024 lds" % (vb, srd, srd + 3, sreg), tag)
def tr2(A, fr, aset, which, part):
    ar = AREG + 8 * aset + 4 * which + 2 * part
    A("ds_read_b64_tr_b16 v[%d:%d], v%d offset:%d" % (ar, ar + 1, fr["va"][which], fr["imm"] + fr["off2"] * part))
def bregS(s, rg):
    if s < 36: return breg(2 * s + rg, BOV_P)
    b = OJ + 8 * ((s - 36) % 2) + 4 * rg
    return "v[%d:%d]" % (b, b + 3)

def emit_unit2(A, steps, plan, pre_tags, nxt, placed, to_epi, aset):
    n = len(steps)
    vmq = [t for t in pre_tags for _ in range(2)]
    lgq = [("t", 0)] * 4
    for t in range(n):
        ft = t + 1
        if ft < n: want = ("d", ft); nx = (steps[ft]["fr"], aset[ft])
        elif nxt is not None: want = ("n", 0); nx = nxt
        else: want = None; nx = None
        vmn = None
        if want is not None and want in vmq:
            idx = max(i for i, e in enumerate(vmq) if e == want)
            vmn = len(vmq) - 1 - idx; vmq = vmq[idx + 1:]
        idx = max(i for i, e in enumerate(lgq) if e == ("t", t))
        lgn = len(lgq) - 1 - idx; lgq = lgq[idx + 1:]
        assert lgn < 16 and (vmn is None or vmn < 64), (lgn, vmn)
        if vmn is None: A("s_waitcnt lgkmcnt(%d)" % lgn)
        else: A("s_waitcnt vmcnt(%d) lgkmcnt(%d)" % (vmn, lgn))
        dps = plan[t]
        def put(k):
            for o in placed.get((t, k), []):
                A(o.text)
                if o.kind == "lds": lgq.append(("x", 0))
                if o.kind == "vmem": vmq.append(("x", 0))
        def mfma(tile, rg):
            ai = tile * 2 + rg
            d = (EPI if (t == n - 1 and to_epi) else ACC) + 16 * ai
            c = "0" if t == 0 else "v[%d:%d]" % (ACC + 16 * ai, ACC + 16 * ai + 15)
            ar = AREG + 8 * aset[t] + 4 * tile
            A("v_mfma_f32_32x32x16_bf16 v[%d:%d], v[%d:%d], %s, %s" % (d, d + 15, ar, ar + 3, steps[t]["b"][rg], c))
        if nx: tr2(A, nx[0], nx[1], 0, 0); tr2(A, nx[0], nx[1], 0, 1); lgq += [("t", ft)] * 2
        if len(dps) > 0: A(dps[0][0])
        mfma(0, 0)
        if nx: tr2(A, nx[0], nx[1], 1, 0); lgq.append(("t", ft))
        if len(dps) > 0: A(dps[0][1]); vmq.append(dps[0][3])
        put(0)
        mfma(0, 1)
        if nx: tr2(A, nx[0], nx[1], 1, 1); lgq.append(("t", ft))
        if len(dps) > 0: A(dps[0][2]); vmq.append(dps[0][3])
        put(1)
        if len(dps) > 1: A(dps[1][0])
        mfma(1, 0)
        if len(dps) > 1: A(dps[1][1]); vmq.append(dps[1][3])
        put(2)
        mfma(1, 1)
        if len(dps) > 1: A(dps[1][2]); vmq.append(dps[1][3])
        put(3)

def cur_dma(f, slot):
    return pdma(SRD_WO if f >= 36 else SRD_C, V_CA, V_CB, TAB + f, slot, ("d", f))
def ojit(s_first, placed):
    for u in range(5):
        placed.setdefault((s_first + u - 1, 0), [])[:0] = [Op("ds_read_b128 %s, v%d offset:%d" % (bregS(36 + u, rg), V_EP, rg * 32 * OS + 32 * u), "lds", cost=1) for rg in range(2)]

def body_P1(A, placed):
    R = 7
    steps = [dict(b=(bregS(t, 0), bregS(t, 1)), fr=pfrag(t % R, t < 36)) for t in range(41)]
    plan = []
    for t in range(41):
        f = t + 6
        if f < 41: plan.append([cur_dma(f, f % R)])
        else: plan.append([pdma(SRD_N, V_NA, V_NB, TAB + f - 41, f - 41, ("n", f - 41))])
    ojit(36, placed)
    emit_unit2(A, steps, plan, [("d", f) for f in range(1, 6)], (pfrag(0, True), 0), placed, True, aset_seq(41))

def own_dma(f):
    return pdma(SRD_N if f < 9 else SRD_WO, V_NA, V_NB, OT[f], f, ("n", f))
def body_P2(A, placed):
    R = 14; DD = 13
    steps = [dict(b=(bregS(t, 0), bregS(t, 1)), fr=pfrag(t % R, t < 36)) for t in range(41)]
    plan = [[] for _ in range(41)]
    nxtf = 6
    for t in range(41):
        target = t + DD
        k = 0
        while k < 2 and nxtf <= target and nxtf < 41 + 11:
            f = nxtf
            plan[t].append(cur_dma(f, f % R) if f < 41 else own_dma(f - 41))
            if f >= 41:
                sl = f - 41
                prev = max(x for x in range(41) if x % R == sl)
                if prev > t: plan[t].pop(); break
            nxtf += 1; k += 1
    assert nxtf == 52, nxtf
    ojit(36, placed)
    emit_unit2(A, steps, plan, [("d", f) for f in range(1, 6)], (pfrag(0, True), 0), placed, True, aset_seq(41))

def body_P3(A, w, placed):
    n = 11 if w == 3 else 10
    steps = []
    for t in range(n):
        if t < 9: s = s_of(9 * w + t); steps.append(dict(b=(bregS(s, 0), bregS(s, 1)), fr=pfrag(t, True)))
        else:
            b = OJ + 8 * (t - 9)
            steps.append(dict(b=("v[%d:%d]" % (b, b + 3), "v[%d:%d]" % (b + 4, b + 7)), fr=pfrag(t, False)))
    for t in range(9, n):
        u = w if t == 9 else 4
        b = OJ + 8 * (t - 9)
        placed.setdefault((t - 2, 0), [])[:0] = [Op("ds_read_b128 v[%d:%d], v%d offset:%d" % (b + 4 * rg, b + 4 * rg + 3, V_EP, rg * 32 * OS + 32 * u), "lds", cost=1) for rg in range(2)]
    emit_unit2(A, steps, [[] for _ in range(n)], [("d", f) for f in range(1, n)], None, placed, False, [t % 2 for t in range(n)])

def silu_ops_g(temps, quads):
    ops = []; n = 0
    for tile in range(2):
        for rg in range(2):
            for s in range(2):
                P = quads[(tile * 2 + rg) * 2 + s]
                for gq in range(2):
                    ops += silu_group(EPI + 16 * (tile * 2 + rg) + 8 * s + 4 * gq, rg, temps + 4 * (n % 4), P + 2 * gq); n += 1
    return ops
def silu_flush64_ops(quads):
    ops = []
    for tile in range(2):
        for rg in range(2):
            for s in range(2):
                P = quads[(tile * 2 + rg) * 2 + s]
                for h in range(2):
                    ops.append(Op("ds_write_b64 v%d, v[%d:%d] offset:%d" % (V_EP, P + 2 * h, P + 2 * h + 1, tile * 4096 + s * 2048 + rg * 1024 + 8 * h), "lds"))
    return ops

def o_setup_s(A):
    h = S_W
    A("s_lshl_b32 s%d, s%d, 2\ns_add_u32 s%d, s%d, s%d" % (S_T1, S_J, S_T1, S_T1, h))
    A("s_lshl_b32 s%d, s%d, 7\ns_add_u32 s%d, s%d, %d" % (S_LO, S_T1, S_LO, S_LO, WS_F2))
    A("s_lshl_b32 s%d, s%d, 11\ns_add_u32 s%d, s%d, %d" % (S_CE, S_T1, S_CE, S_CE, WS_KVT))
    A("v_lshrrev_b32 v23, 5, v%d" % V_LANE)
    A("s_and_b32 s%d, s%d, 1" % (S_T0, h))
    A("v_cmp_eq_u32 vcc, 0, v23\ns_mov_b64 s[%d:%d], vcc" % (S_U8, S_U8 + 1))
    A("s_cmp_eq_u32 s%d, 0\ns_cselect_b64 s[%d:%d], 0, vcc" % (S_T0, S_C6, S_C6 + 1))
    A("s_mul_i32 s%d, s%d, 36\ns_lshl_b32 s%d, s%d, 2\ns_sub_u32 s%d, s%d, s%d\ns_add_u32 s%d, s%d, %d" % (S_T1, h, S_T3, S_T0, S_T1, S_T1, S_T3, S_RHO, S_T1, QB + 288))
    A("v_lshlrev_b32 v21, 2, v%d" % V_LANE)
def o_setup_v_ops():
    E = EPI
    txt = [
      "v_and_b32 v%d, 31, v%d" % (E + 26, V_LANE),
      "v_cmp_eq_u32 vcc, 22, v%d\nv_mov_b32 v%d, 18\ns_nop 0\nv_cndmask_b32 v%d, v%d, v%d, vcc" % (E + 26, E + 27, E + 26, E + 26, E + 27),
      "v_cmp_ge_u32 vcc, 18, v%d\nv_lshrrev_b32 v23, 5, v%d\nv_lshlrev_b32 v%d, 4, v%d" % (E + 26, V_LANE, E + 26, E + 26),
      "v_mul_u32_u24 v%d, 608, v23\nv_add_u32 v%d, v%d, v%d\nv_mov_b32 v%d, %s" % (E + 27, E + 27, E + 26, E + 27, E + 1, OOB),
      "v_cndmask_b32 v%d, v%d, v%d, vcc\nv_cndmask_b32 v%d, v%d, v%d, vcc" % (E + 2, E + 1, E + 27, E + 3, E + 1, E + 26),
      "v_and_b32 v%d, 31, v%d\nv_mul_u32_u24 v%d, %d, v%d\nv_lshl_add_u32 v%d, v23, 4, v%d\nv_add_u32 v%d, s%d, v%d" % (E + 27, V_LANE, E + 26, QS, E + 27, E + 26, E + 26, E + 24, S_RHO, E + 26),
      "s_mul_i32 s%d, s%d, 36\ns_add_u32 s%d, s%d, %d" % (S_T1, S_W, S_T1, S_T1, OB),
      "v_mul_u32_u24 v%d, %d, v%d\nv_lshl_add_u32 v%d, v23, 3, v%d\nv_add_u32 v%d, s%d, v%d" % (E + 26, OS, E + 27, E + 26, E + 26, E + 25, S_T1, E + 26),
    ]
    return [Op(t) for t in txt]
def o_hook2(placed):
    E = EPI; KV = E + 4; AK = E + 16; DO = E + 32; BQ = HOLDP[:4]; T = E + 26
    P = lambda t, k, ops: placed.setdefault((t, k), []).extend(ops)
    P(10, 2, [Op("buffer_load_dword v22, v21, s[20:23], s%d offen sc1" % S_LO, "vmem")])
    so = o_setup_v_ops()
    P(19, 1, so[:3]); P(19, 2, so[3:6]); P(19, 3, so[6:])
    P(20, 1, [check_op("L_c2", 22, 21, S_LO, 16)])
    P(20, 2, [Op("buffer_load_dwordx4 v[%d:%d], v%d, s[20:23], s%d offen sc1" % (KV, KV + 3, E + 2, S_CE), "vmem"),
              Op("buffer_load_dwordx4 v[%d:%d], v%d, s[20:23], s%d offen offset:304 sc1" % (KV + 4, KV + 7, E + 2, S_CE), "vmem"),
              Op("buffer_load_dwordx4 v[%d:%d], v%d, s[20:23], s%d offen offset:1216 sc1" % (KV + 8, KV + 11, E + 3, S_CE), "vmem")])
    n = 0
    for rg in range(2):
        for t in range(2):
            b = BQ[rg * 2 + t]; off = rg * 32 * QS + t * 32
            P(21 + n, 2, [Op("ds_read_b64 v[%d:%d], v%d offset:%d" % (b, b + 1, E + 24, off), "lds"), Op("ds_read_b64 v[%d:%d], v%d offset:%d" % (b + 2, b + 3, E + 24, off + 8), "lds")]); n += 1
    m_hs = "s[%d:%d]" % (S_C6, S_C6 + 1); m_h0 = "s[%d:%d]" % (S_U8, S_U8 + 1)
    ops = []
    for jj in range(2): ops.append(Op("v_cndmask_b32_e64 v%d, v%d, 0, %s" % (KV + jj, KV + jj, m_hs)))
    for jj in range(2): ops.append(Op("v_cndmask_b32_e64 v%d, 0, v%d, %s" % (KV + 8 + jj, KV + 8 + jj, m_h0)))
    for jj in range(2, 4): ops.append(Op("v_cndmask_b32_e64 v%d, 0, v%d, %s" % (KV + 8 + jj, KV + 8 + jj, m_hs)))
    P(26, 2, ops)
    P(26, 3, [Op("v_cvt_pk_bf16_f32 v%d, v%d, v%d" % (AK + p, KV + 2 * p, KV + 2 * p + 1)) for p in range(4)])
    P(27, 0, [Op("v_cvt_pk_bf16_f32 v%d, v%d, v%d" % (AK + 4, KV + 8, KV + 9)), Op("v_cvt_pk_bf16_f32 v%d, v%d, v%d" % (AK + 5, KV + 10, KV + 11)), Op("v_mov_b32 v%d, 0" % (AK + 6)), Op("v_mov_b32 v%d, 0" % (AK + 7))])
    for rg in range(2):
        P(27, 2 + rg, [Op("v_mfma_f32_32x32x16_bf16 v[%d:%d], v[%d:%d], v[%d:%d], 0" % (DO + 16 * rg, DO + 16 * rg + 15, AK, AK + 3, BQ[rg * 2], BQ[rg * 2] + 3))])
        P(28, 1 + rg, [Op("v_mfma_f32_32x32x16_bf16 v[%d:%d], v[%d:%d], v[%d:%d], v[%d:%d]" % (DO + 16 * rg, DO + 16 * rg + 15, AK + 4, AK + 7, BQ[rg * 2 + 1], BQ[rg * 2 + 1] + 3, DO + 16 * rg, DO + 16 * rg + 15))])
    for rg in range(2):
        d = DO + 16 * rg; t0 = 30 + rg
        P(t0, 0, [Op("v_add_f32 v%d, 0x358637bd, v%d" % (T, d + 10))])
        P(t0, 1, [Op("v_rcp_f32 v%d, v%d" % (T, T), "trans")])
        P(t0, 2, [Op("v_mul_f32 v%d, v%d, v%d" % (d + q, d + q, T)) for q in range(6)])
        P(t0, 3, [Op("v_mul_f32 v%d, v%d, v%d" % (d + q, d + q, T)) for q in range(6, 10)])
        P(t0 + 1, 0, [Op("v_cvt_pk_bf16_f32 v%d, v%d, v%d" % (d + p, d + 2 * p, d + 2 * p + 1)) for p in range(2)])
        P(t0 + 1, 1, [Op("v_cvt_pk_bf16_f32 v%d, v%d, v%d" % (d + p, d + 2 * p, d + 2 * p + 1)) for p in range(2, 5)])
        P(t0 + 1, 2, [Op("ds_write_b32 v%d, v%d offset:%d" % (E + 25, d + p, rg * 32 * OS + (p // 2) * 16 + (p % 2) * 4), "lds") for p in range(4)])
        P(t0 + 1, 3, [Op("s_mov_b64 exec, %s\nds_write_b32 v%d, v%d offset:%d\ns_mov_b64 exec, -1" % (m_h0, E + 25, d + 4, rg * 32 * OS + 32), "lds")])
    P(34, 1, [Op("v_and_b32 v23, 31, v%d\nv_mul_u32_u24 v23, %d, v23\nv_lshrrev_b32 v22, 5, v%d\nv_lshl_add_u32 v23, v22, 4, v23\nv_add_u32 v%d, %d, v23" % (V_LANE, OS, V_LANE, V_EP, OB))])
    P(34, 3, [Op("s_waitcnt lgkmcnt(0)\ns_barrier", "salu")])

def silu_group(e0, rg, T, P0):
    ops = []
    for i in range(4): ops.append(Op("v_mul_f32 v%d, v%d, v%d" % (T + i, e0 + i, V_C1 + rg)))
    for i in range(4): ops.append(Op("v_exp_f32 v%d, v%d" % (T + i, T + i), "trans"))
    for i in range(4): ops.append(Op("v_fma_f32 v%d, v%d, v%d, v%d" % (T + i, T + i, V_SD + rg, V_SD + rg)))
    for i in range(4): ops.append(Op("v_rcp_f32 v%d, v%d" % (T + i, T + i), "trans"))
    for i in range(4): ops.append(Op("v_mul_f32 v%d, v%d, v%d" % (T + i, e0 + i, T + i)))
    ops.append(Op("v_cvt_pk_bf16_f32 v%d, v%d, v%d" % (P0, T, T + 1)))
    ops.append(Op("v_cvt_pk_bf16_f32 v%d, v%d, v%d" % (P0 + 1, T + 2, T + 3)))
    return ops
def silu_ops():
    ops = []; n = 0
    for tile in range(2):
        for rg in range(2):
            for s in range(2):
                P = HOLD + 4 * ((tile * 2 + rg) * 2 + s)
                for gq in range(2):
                    ops += silu_group(EPI + 16 * (tile * 2 + rg) + 8 * s + 4 * gq, rg, TMP + 4 * (n % 4), P + 2 * gq); n += 1
    return ops
def silu_flush(A):
    for tile in range(2):
        for rg in range(2):
            for s in range(2):
                P = HOLD + 4 * ((tile * 2 + rg) * 2 + s)
                A("ds_write_b128 v%d, v[%d:%d] offset:%d" % (V_EP, P, P + 3, tile * 4096 + s * 2048 + rg * 1024))
def q_ops():
    ops = []; n = 0
    for tile in range(2):
        for g in range(4):
            k = 4 * tile + g
            ops.append(Op("\n".join([
                "s_add_u32 s%d, s%d, %d" % (S_T1, S_U8, (k - 9) & 0xffffffff),
                "s_cmp_lt_u32 s%d, 9" % S_T1,
                "s_cselect_b32 s%d, 0xff800000, 0" % S_LO,
                "s_cselect_b32 s%d, 0, 1.0" % S_CE,
                "s_cselect_b32 s%d, 0, 0x358637bd" % S_C6]), "salu", cost=3))
            for rg in range(2):
                T = TMP + 8 * (n % 2); n += 1
                P = HOLD + 2 * (k * 2 + rg)
                e0 = EPI + 16 * (tile * 2 + rg) + 4 * g
                for i in range(4): ops.append(Op("v_mul_f32 v%d, v%d, v%d" % (T + i, e0 + i, V_RS + rg)))
                for i in range(4): ops.append(Op("v_mul_f32 v%d, 0x3fb8aa3b, v%d" % (T + 4 + i, T + i)))
                for i in range(4): ops.append(Op("v_min_f32 v%d, 0, v%d" % (T + 4 + i, T + 4 + i)))
                for i in range(4): ops.append(Op("v_exp_f32 v%d, v%d" % (T + 4 + i, T + 4 + i), "trans"))
                for i in range(4): ops.append(Op("v_max_f32 v%d, s%d, v%d" % (T + i, S_LO, T + i)))
                for i in range(4): ops.append(Op("v_fma_f32 v%d, v%d, s%d, v%d" % (T + i, T + 4 + i, S_CE, T + i)))
                for i in range(4): ops.append(Op("v_add_f32 v%d, s%d, v%d" % (T + i, S_C6, T + i)))
                ops.append(Op("v_cvt_pk_bf16_f32 v%d, v%d, v%d" % (P, T, T + 1)))
                ops.append(Op("v_cvt_pk_bf16_f32 v%d, v%d, v%d" % (P + 1, T + 2, T + 3)))
    return ops
def q_flush(A):
    for k in range(8):
        A("s_add_u32 s%d, s%d, %d\ns_lshl_b32 s%d, s%d, 4\ns_cmp_lt_u32 s%d, 27\ns_cselect_b32 s%d, s%d, 0x40000" % (S_T0, S_U8, k, S_T1, S_T0, S_T0, S_GOFF, S_T1))
        A("v_add_u32 v%d, s%d, v%d" % (VT + k % 2, S_GOFF, V_EP))
        for rg in range(2):
            P = HOLD + 2 * (k * 2 + rg)
            A("ds_write_b64 v%d, v[%d:%d] offset:%d" % (VT + k % 2, P, P + 1, rg * 32 * QS))
def cvt_hold_ops():
    ops = []
    for ai in range(4):
        for half in range(2):
            b = EPI + 16 * ai + 8 * half; q = HOLDP[ai * 2 + half]
            for p in range(4): ops.append(Op("v_cvt_pk_bf16_f32 v%d, v%d, v%d" % (q + p, b + 2 * p, b + 2 * p + 1)))
    return ops
def cvt_inplace_ops():
    ops = []
    for ai in range(4):
        for half in range(2):
            b = EPI + 16 * ai + 8 * half
            for p in range(4): ops.append(Op("v_cvt_pk_bf16_f32 v%d, v%d, v%d" % (b + p, b + 2 * p, b + 2 * p + 1)))
    return ops
def gstore_ops(quad_of, sbase, flavor="sc1"):
    ops = []
    for ai in range(4):
        if ai == 2: ops.append(Op("s_add_u32 s%d, s%d, 4096" % (sbase, sbase), "salu"))
        for half in range(2):
            q = quad_of(ai, half)
            ops.append(Op("buffer_store_dwordx4 v[%d:%d], v%d, s[%d:%d], s%d offen offset:%d %s" % (q, q + 3, V_L16, SRD_WS, SRD_WS + 3, sbase, (ai % 2) * 2048 + half * 1024, flavor), "vmem"))
    return ops
def emit_ops(A, ops):
    for o in ops: A(o.text)

def set_srd(A, dst, plo, size):
    A("s_mov_b32 s%d, s%d\ns_mov_b32 s%d, s%d\ns_mov_b32 s%d, %d\ns_mov_b32 s%d, 0x20000" % (dst, plo, dst + 1, plo + 1, dst + 2, size, dst + 3))
def emit_tab(A, kind, base, frange, R, k0=0, exact36=True):
    for f in frange:
        kk = k0 + f
        ex = (kind == "P" and kk == 36 and exact36 and k0 == 0)
        adj = slot_info(f % R, ex)[1]
        if kind == "Q": A("s_mov_b32 s%d, %d" % (base + f, kk * 16 * 3456 - adj))
        elif kind == "F": A("s_mov_b32 s%d, %d" % (base + f, kk * 16 * 9216 - adj))
        elif kk < 36: A("s_add_u32 s%d, s%d, %d" % (base + f, S_W2B, (kk * 16 * 1152 - adj) & 0xffffffff))
        else:
            c = (kk - 36) * 16 * 1152 - adj
            assert c >= 0, (kk, f)
            A("s_add_u32 s%d, s%d, %d" % (base + f, S_WOB, c))
def next_F(A, s_fu, kq=False):
    set_srd(A, SRD_N, P_W1, SZ_W1)
    A("s_mul_i32 s%d, s%d, 1152" % (S_T0, S_J))
    A("s_lshl_b32 s%d, s%d, 7" % (S_T1, s_fu))
    A("s_add_u32 s%d, s%d, s%d" % (S_T0, S_T0, S_T1))
    if kq:
        A("s_mul_i32 s%d, s%d, %d" % (S_T1, S_W, 9 * 16 * 9216))
        A("s_add_u32 s%d, s%d, s%d" % (S_T0, S_T0, S_T1))
    A("v_mul_u32_u24 v%d, 9216, v%d" % (V_NA, V_ROW8))
    A("v_add3_u32 v%d, v%d, v%d, s%d" % (V_NA, V_NA, V_SC16, S_T0))
    A("v_add_u32 v%d, %d, v%d" % (V_NB, 8 * 9216 - 1024, V_NA))
    emit_tab(A, "F", TABN, range(D), 6)
def next_Q(A, s_u):
    set_srd(A, SRD_N, P_QKV, SZ_QKV)
    t0, t1, t2 = 21, 22, 23
    A("s_lshl_b32 s%d, s%d, 3" % (S_T0, s_u))
    A("v_add_u32 v%d, s%d, v%d" % (t0, S_T0, V_SC))
    A("v_mul_u32_u24 v%d, 57, v%d\nv_lshrrev_b32 v%d, 9, v%d" % (t1, t0, t1, t1))
    A("v_mul_u32_u24 v%d, 9, v%d\nv_sub_u32 v%d, v%d, v%d\nv_lshlrev_b32 v%d, 4, v%d" % (t2, t1, t2, t0, t2, t2, t2))
    A("v_add_u32 v%d, 1, v%d\nv_cmp_eq_u32 vcc, 3, v%d\nv_mul_u32_u24 v%d, 1152, v%d\ns_nop 0" % (t1, t1, t1, t1, t1))
    A("v_cndmask_b32_e64 v%d, v%d, 0, vcc" % (t1, t1))
    A("s_mul_i32 s%d, s%d, 144" % (S_T0, S_J))
    A("v_add3_u32 v%d, v%d, v%d, s%d" % (t1, t1, t2, S_T0))
    A("v_mul_u32_u24 v%d, 3456, v%d\nv_add_u32 v%d, v%d, v%d" % (V_NA, V_ROW8, V_NA, V_NA, t1))
    A("v_cmp_le_u32 vcc, 27, v%d\nv_mov_b32 v%d, %s\ns_nop 0" % (t0, t2, OOB))
    A("v_cndmask_b32 v%d, v%d, v%d, vcc" % (V_NA, V_NA, t2))
    A("v_add_u32 v%d, %d, v%d" % (V_NB, 8 * 3456 - 1024, V_NA))
    emit_tab(A, "Q", TABN, range(D), 6)
def next_P(A, s_nu, tabs=True):
    set_srd(A, SRD_N, P_W2, SZ_W2)
    A("s_lshl_b32 s%d, s%d, 7" % (S_T1, s_nu))
    A("v_mul_u32_u24 v%d, 1152, v%d" % (V_NA, V_ROW8))
    A("v_add3_u32 v%d, v%d, v%d, s%d" % (V_NA, V_NA, V_SC16, S_T1))
    A("v_add_u32 v%d, %d, v%d" % (V_NB, 8 * 1152 - 1024, V_NA))
    if tabs: emit_tab(A, "P", TABN, range(D), 7)
def advance(A):
    for i in range(3): A("s_mov_b32 s%d, s%d" % (SRD_C + i, SRD_N + i))
    A("v_mov_b32 v%d, v%d\nv_mov_b32 v%d, v%d" % (V_CA, V_NA, V_CB, V_NB))
def issue_first(A, n=D):
    for f in range(n):
        m0s, i1, i2 = dma_instrs("N", TABN + f, f)
        A(m0s); A("s_nop 0"); A(i1); A(i2)

def gen_prefetch(A, part):
    A("s_lshl_b32 s%d, s%d, 6" % (S_T0, S_W))
    A("v_add_u32 v40, s%d, v%d" % (S_T0, V_LANE))
    if part == "qkv":
        A("v_mul_u32_u24 v41, 5462, v40\nv_lshrrev_b32 v41, 16, v41")
        A("v_mul_u32_u24 v42, 12, v41\nv_sub_u32 v42, v40, v42")
        A("v_lshrrev_b32 v43, 2, v42\nv_mul_u32_u24 v43, 1152, v43")
        A("v_and_b32 v42, 3, v42\nv_lshl_add_u32 v43, v42, 6, v43")
        A("v_mul_u32_u24 v41, 3456, v41\nv_add_u32 v41, v41, v43")
        A("s_mul_i32 s%d, s%d, 144\ns_andn2_b32 s%d, s%d, 127" % (S_T0, S_J, S_T0, S_T0))
        A("s_mul_i32 s%d, s%d, %d\ns_add_u32 s%d, s%d, s%d" % (S_T1, S_R, 18 * 3456, S_T0, S_T0, S_T1))
        A("v_cmp_le_u32 vcc, 216, v40\nv_mov_b32 v42, %s\ns_nop 0\nv_cndmask_b32 v41, v41, v42, vcc" % OOB)
        set_srd(A, SRD_N, P_QKV, SZ_QKV)
        A("buffer_load_dword v168, v41, s[%d:%d], s%d offen" % (SRD_N, SRD_N + 3, S_T0))
        return 1
    stride, ptr, sz = (9216, P_W1, SZ_W1) if part == "w1" else (1152, P_W2, SZ_W2)
    set_srd(A, SRD_N, ptr, sz)
    if part == "w1":
        A("s_mul_i32 s%d, s%d, 1152" % (S_T0, S_J))
        A("s_mul_i32 s%d, s%d, %d\ns_add_u32 s%d, s%d, s%d" % (S_T1, S_R, 18 * 9216, S_T0, S_T0, S_T1))
    else:
        A("s_mul_i32 s%d, s%d, %d\ns_add_u32 s%d, s%d, s%d" % (S_T1, S_R, 18 * 1152, S_T0, S_W2B, S_T1))
    for k in range(2):
        if k == 1: A("v_add_u32 v40, 256, v40")
        A("v_mul_u32_u24 v41, 3641, v40\nv_lshrrev_b32 v41, 16, v41")
        A("v_mul_u32_u24 v42, 18, v41\nv_sub_u32 v42, v40, v42")
        A("v_mul_u32_u24 v41, %d, v41\nv_lshl_add_u32 v41, v42, 6, v41" % stride)
        A("v_cmp_le_u32 vcc, 324, v40\nv_mov_b32 v42, %s\ns_nop 0\nv_cndmask_b32 v41, v41, v42, vcc" % OOB)
        A("buffer_load_dword v%d, v41, s[%d:%d], s%d offen" % (169 + k + (2 if part == "w2" else 0), SRD_N, SRD_N + 3, S_T0))
    if part == "w2":
        A("s_mul_i32 s%d, s%d, 41" % (S_T0, S_R))
        A("v_add_u32 v40, s%d, v%d" % (S_T0, V_LANE))
        A("v_lshlrev_b32 v41, 6, v40")
        A("v_cmp_le_u32 vcc, 41, v%d\nv_mov_b32 v42, %s\ns_nop 0\nv_cndmask_b32 v41, v41, v42, vcc" % (V_LANE, OOB))
        A("buffer_load_dword v173, v41, s[%d:%d], s%d offen" % (SRD_WO, SRD_WO + 3, S_WOB))
        return 3
    return 2

def poll_flags(A, label, s_off, nlanes, vaddr=21, vdat=22):
    A("v_lshlrev_b32 v%d, 2, v%d" % (vaddr, V_LANE))
    A("v_cmp_gt_u32 vcc, %d, v%d" % (nlanes, V_LANE))
    A("s_mov_b64 s[0:1], vcc")
    A("s_mov_b32 s%d, 0" % S_T2)
    A("%s:" % label)
    A("buffer_load_dword v%d, v%d, s[20:23], s%d offen sc1" % (vdat, vaddr, s_off))
    A("s_add_u32 s%d, s%d, 1" % (S_T2, S_T2))
    A("s_waitcnt vmcnt(0)")
    A("v_cmp_ne_u32 vcc, s%d, v%d" % (S_NONCE, vdat))
    A("s_and_b64 vcc, vcc, s[0:1]")
    A("s_cbranch_vccz %s_ok" % label)
    A("s_cmp_gt_u32 s%d, %d\ns_cbranch_scc1 %s_ok" % (S_T2, SPIN, label))
    A("s_sleep 1")
    A("s_branch %s" % label)
    A("%s_ok:" % label)

def set_flag(A, s_off):
    A("v_mov_b32 v21, s%d\nv_mov_b32 v22, 0" % S_NONCE)
    A("v_cmp_eq_u32 vcc, 0, v%d\ns_and_saveexec_b64 s[0:1], vcc" % V_LANE)
    A("buffer_store_dword v21, v22, s[20:23], s%d offen sc1" % s_off)
    A("s_mov_b64 exec, s[0:1]")

STRIDE_PF = 128
def gen_pf3(A):
    per = 1152 // STRIDE_PF
    tot = 18 * per
    ninstr = (tot + 63) // 64
    magic = (65536 + per - 1) // per
    regs = []
    for k in range(ninstr):
        a = 24 + k
        A("v_add_u32 v40, %d, v%d" % (64 * k, V_LANE))
        A("v_mul_u32_u24 v41, %d, v40\nv_lshrrev_b32 v41, 16, v41" % magic)
        A("v_mul_u32_u24 v42, %d, v41\nv_sub_u32 v42, v40, v42\nv_mul_u32_u24 v42, %d, v42" % (per, STRIDE_PF))
        A("v_cmp_le_u32 vcc, %d, v40\nv_mov_b32 v43, %s" % (tot, OOB))
        A("v_mul_u32_u24 v44, 9216, v41\nv_add_u32 v44, v44, v42\nv_cndmask_b32 v%d, v44, v43, vcc" % a)
        A("v_mul_u32_u24 v44, 1152, v41\nv_add_u32 v44, v44, v42\nv_cndmask_b32 v%d, v44, v43, vcc" % (a + 8))
        regs.append(a)
    A("s_mul_i32 s%d, s%d, 1152\ns_mul_i32 s%d, s%d, %d\ns_add_u32 s%d, s%d, s%d" % (S_T0, S_J, S_T1, S_R, 18 * 9216, S_T0, S_T0, S_T1))
    for k, a in enumerate(regs): A("buffer_load_dword v%d, v%d, s[%d:%d], s%d offen" % (168 + k % 3, a, SRD_N, SRD_N + 3, S_T0))
    A("s_mul_i32 s%d, s%d, %d\ns_add_u32 s%d, s%d, s%d" % (S_LO, S_R, 18 * 1152, S_LO, S_LO, S_W2B))
    A("s_mov_b32 s92, s%d\ns_mov_b32 s93, s%d\ns_mov_b32 s94, %d\ns_mov_b32 s95, 0x20000" % (P_W2, P_W2 + 1, SZ_W2))
    for k, a in enumerate(regs): A("buffer_load_dword v%d, v%d, s[92:95], s%d offen" % (171 + k % 3, a + 8, S_LO))
    n = (72 * per + 31) // 32
    A("s_mul_i32 s%d, s%d, %d\nv_add_u32 v40, s%d, v%d\nv_mul_u32_u24 v41, %d, v40" % (S_LO, S_R, n, S_LO, V_LANE, STRIDE_PF))
    A("v_cmp_le_u32 vcc, %d, v%d\nv_mov_b32 v43, %s\ns_nop 0\nv_cndmask_b32 v41, v41, v43, vcc" % (n, V_LANE, OOB))
    A("buffer_load_dword v173, v41, s[%d:%d], s%d offen" % (SRD_WO, SRD_WO + 3, S_WOB))

def XRQ(i): return EPI + 4 * i if i < 16 else TMP + 8 + 4 * (i - 16)
def xfrag_read(t, rg):
    return "ds_read_b128 %s, v%d offset:%d" % (breg(2 * t + rg, BOV_F), TMP + 2 * rg + (t & 1), 2 * (t - (t & 1)) * 512 + (t & 1) * 1024)
def r1_ops():
    pl = {}
    for t in range(34):
        pl.setdefault((t, 2), []).extend([Op(xfrag_read(t + 2, rg), "lds", cost=1) for rg in range(2)])
    V = TMP + 16
    ops = [Op("v_mov_b32 v%d, 0" % (V + i)) for i in range(4)]
    for i in range(72): ops.append(Op("v_dot2_f32_bf16 v%d, v%d, v%d, v%d" % (V + i % 4, XRQ(i // 4) + i % 4, XRQ(i // 4) + i % 4, V + i % 4)))
    place(ops, 0, 14, pl)
    seq = ["v_add_f32 v%d, v%d, v%d" % (V, V, V + 1), "v_add_f32 v%d, v%d, v%d" % (V + 2, V + 2, V + 3), "s_nop 0\nv_add_f32 v%d, v%d, v%d\ns_nop 1" % (V, V, V + 2),
           "v_add_f32_dpp v%d, v%d, v%d quad_perm:[1,0,3,2] row_mask:0xf bank_mask:0xf\ns_nop 1" % (V, V, V),
           "v_add_f32_dpp v%d, v%d, v%d quad_perm:[2,3,0,1] row_mask:0xf bank_mask:0xf" % (V, V, V),
           "v_mul_f32 v%d, 0x%08x, v%d" % (V, f2u(1.0 / 576), V),
           "v_fma_f32 v%d, -v%d, v%d, v%d" % (V, TMP + 4, TMP + 4, V), "v_max_f32 v%d, 0, v%d" % (V, V),
           "v_cvt_pk_bf16_f32 v%d, v%d, v%d\nv_lshlrev_b32 v%d, 16, v%d" % (V, V, V, V, V),
           "v_add_f32 v%d, 0x%08x, v%d" % (V, f2u(1e-5), V),
           "v_cvt_pk_bf16_f32 v%d, v%d, v%d\nv_lshlrev_b32 v%d, 16, v%d" % (V, V, V, V, V),
           "v_sqrt_f32 v%d, v%d\ns_nop 0" % (V, V),
           "v_cvt_pk_bf16_f32 v%d, v%d, v%d\nv_lshlrev_b32 v%d, 16, v%d" % (V, V, V, V, V),
           "s_lshl_b32 s%d, s%d, 6\ns_add_u32 s%d, s%d, %d\nv_lshrrev_b32 v%d, 2, v%d\nv_lshlrev_b32 v%d, 2, v%d\nv_add_u32 v%d, s%d, v%d" % (S_T0, S_W, S_T0, S_T0, STAT, V + 1, V_LANE, V + 1, V + 1, V + 1, S_T0, V + 1)]
    for k, s in enumerate(seq): pl.setdefault((16 + k // 3, 1 + k % 3), []).append(Op(s))
    pl.setdefault((21, 2), []).append(Op("ds_write_b32 v%d, v%d" % (V + 1, V), "lds"))
    pl.setdefault((31, 3), []).append(Op("s_waitcnt lgkmcnt(0)\ns_barrier", "salu"))
    pl.setdefault((32, 1), []).append(Op("v_and_b32 v%d, 31, v%d\nv_lshlrev_b32 v%d, 2, v%d\nv_add_u32 v%d, %d, v%d" % (V + 1, V_LANE, V + 1, V + 1, V + 1, STAT, V + 1)))
    pl.setdefault((32, 2), []).extend([Op("ds_read_b32 v%d, v%d" % (V_SD, V + 1), "lds"), Op("ds_read_b32 v%d, v%d offset:128" % (V_SD + 1, V + 1), "lds")])
    pl.setdefault((34, 2), []).extend([Op("v_rcp_f32 v%d, v%d" % (V_RS, V_SD), "trans"), Op("v_rcp_f32 v%d, v%d" % (V_RS + 1, V_SD + 1), "trans")])
    pl.setdefault((34, 3), []).extend([Op("v_mul_f32 v%d, 0xbfb8aa3b, v%d" % (V_C1, V_RS)), Op("v_mul_f32 v%d, 0xbfb8aa3b, v%d" % (V_C1 + 1, V_RS + 1))])
    return pl

def gen_prologue(A):
    K = KNAME + "_kernel"
    A(".text\n.globl %s\n.p2align 8\n.type %s,@function\n%s:" % (K, K, K))
    A("s_cmp_ge_u32 s2, 256\ns_cbranch_scc1 L_end")
    A("s_load_dwordx4 s[8:11], s[0:1], 0")
    A("s_load_dwordx2 s[28:29], s[0:1], 16")
    A("s_load_dwordx4 s[32:35], s[0:1], 32")
    A("s_load_dwordx4 s[20:23], s[0:1], 56")
    A("s_load_dwordx2 s[16:17], s[0:1], 48")
    A("v_and_b32 v%d, 63, v0\nv_lshrrev_b32 v2, 6, v0" % V_LANE)
    A("s_lshr_b32 s%d, s2, 3\ns_and_b32 s%d, s2, 7" % (S_R, S_J))
    A("v_readfirstlane_b32 s%d, v2" % S_W)
    A("s_mov_b32 s%d, s2" % S_WG)
    A("s_memrealtime s[40:41]")
    A("s_waitcnt lgkmcnt(0)")
    stamp(A, 0)
    A("s_mov_b32 s36, s34\ns_mov_b32 s37, s35\ns_mov_b32 s34, s32\ns_mov_b32 s35, s33\ns_mov_b32 s32, s10\ns_mov_b32 s33, s11")
    A("s_mov_b32 s10, %d\ns_mov_b32 s11, 0x20000" % SZ_X)
    A("s_mov_b32 s24, s20\ns_mov_b32 s25, s21\ns_mov_b32 s26, 256\ns_mov_b32 s27, 0x20000")
    A("s_mov_b32 s20, s22\ns_mov_b32 s21, s23\ns_mov_b32 s22, %d\ns_mov_b32 s23, 0x20000" % WS_SIZE)
    A("s_mov_b32 s30, %d\ns_mov_b32 s31, 0x20000\ns_mov_b32 s15, 0x20000" % SZ_WO)
    set_srd(A, SRD_C, P_QKV, SZ_QKV)
    A("s_lshl_b32 s%d, s%d, 6\nv_add_u32 v40, s%d, v%d" % (S_T0, S_W, S_T0, V_LANE))
    A("v_mul_u32_u24 v41, 5462, v40\nv_lshrrev_b32 v41, 16, v41")
    A("v_mul_u32_u24 v42, 12, v41\nv_sub_u32 v42, v40, v42")
    A("v_lshrrev_b32 v43, 2, v42\nv_mul_u32_u24 v43, 1152, v43")
    A("v_and_b32 v42, 3, v42\nv_lshl_add_u32 v43, v42, 6, v43")
    A("v_mul_u32_u24 v41, 3456, v41\nv_add_u32 v41, v41, v43")
    A("s_mul_i32 s%d, s%d, 144\ns_andn2_b32 s%d, s%d, 127" % (S_T0, S_J, S_T0, S_T0))
    A("s_mul_i32 s%d, s%d, %d\ns_add_u32 s%d, s%d, s%d" % (S_T1, S_R, 18 * 3456, S_T0, S_T0, S_T1))
    A("v_cmp_le_u32 vcc, 216, v40\nv_mov_b32 v42, %s\ns_nop 0\nv_cndmask_b32 v41, v41, v42, vcc" % OOB)
    A("buffer_load_dword v168, v41, s[%d:%d], s%d offen" % (SRD_C, SRD_C + 3, S_T0))
    A("v_lshrrev_b32 v2, 2, v%d" % V_LANE)
    A("s_lshl_b32 s%d, s%d, 6\ns_lshl_b32 s%d, s%d, 4\ns_add_u32 s%d, s%d, s%d" % (S_T0, S_R, S_T1, S_W, S_T0, S_T0, S_T1))
    A("v_add_u32 v2, s%d, v2\nv_mul_u32_u24 v2, 1152, v2" % S_T0)
    A("v_and_b32 v3, 3, v%d\nv_lshl_add_u32 v2, v3, 4, v2" % V_LANE)
    for i in range(18):
        A("buffer_load_dwordx4 v[%d:%d], v2, s[8:11], 0 offen offset:%d" % (XRQ(i), XRQ(i) + 3, 64 * i))
    nyoung = 0
    A("s_or_b32 s%d, s%d, s%d\ns_cmp_lg_u32 s%d, 0\ns_cbranch_scc1 L_nononce" % (S_T0, S_WG, S_W, S_T0))
    A("s_or_b32 s40, s40, 1\nv_mov_b32 v21, s40\nv_mov_b32 v22, 0")
    A("v_cmp_eq_u32 vcc, 0, v%d\ns_and_saveexec_b64 s[0:1], vcc" % V_LANE)
    A("buffer_store_dword v21, v22, s[24:27], 0 offen sc1")
    A("s_mov_b64 exec, s[0:1]")
    A("L_nononce:")
    A("v_lshrrev_b32 v%d, 3, v%d" % (V_ROW8, V_LANE))
    A("v_bfe_u32 v21, v%d, 4, 1\nv_lshlrev_b32 v21, 2, v21" % V_LANE)
    A("v_and_b32 v%d, 7, v%d\nv_xor_b32 v%d, v%d, v21" % (V_SC, V_LANE, V_SC, V_SC))
    A("v_lshlrev_b32 v%d, 4, v%d\nv_lshlrev_b32 v%d, 4, v%d" % (V_SC16, V_SC, V_L16, V_LANE))
    A("s_mul_i32 s%d, s%d, %d" % (S_RING, S_W, RING_W))
    for i in range(3): A("s_add_u32 s%d, s%d, %d" % (S_M0 + i, S_RING, i * 4096))
    A("s_add_u32 s%d, s%d, %d" % (S_M0 + 3, S_RING, HB - RING))
    A("v_bfe_u32 v21, v%d, 2, 2\nv_lshlrev_b32 v22, 7, v21" % V_LANE)
    A("v_bfe_u32 v23, v%d, 3, 1\nv_lshl_add_u32 v22, v23, 6, v22" % V_LANE)
    A("v_bfe_u32 v23, v%d, 4, 1\nv_lshl_add_u32 v22, v23, 5, v22" % V_LANE)
    A("v_and_b32 v23, 3, v%d\nv_lshl_add_u32 v22, v23, 3, v22" % V_LANE)
    A("v_add_u32 v22, s%d, v22" % S_RING)
    A("v_lshrrev_b32 v23, 5, v%d" % V_LANE)
    A("v_lshl_add_u32 v%d, v23, 10, v22\nv_xor_b32 v%d, 64, v%d" % (V_TA, V_TB, V_TA))
    A("v_lshl_add_u32 v%d, v23, 9, v22\nv_xor_b32 v%d, 64, v%d" % (V_PA, V_PB, V_PA))
    A("s_mul_i32 s%d, s%d, %d\ns_mul_i32 s%d, s%d, %d" % (S_W2B, S_J, 576 * 1152, S_WOB, S_J, 72 * 1152))
    A("s_mov_b32 s%d, s16\ns_mov_b32 s%d, s17" % (S_LO, S_CE))
    import os
    EXP = os.environ.get("EXP", "F")
    next_Q(A, S_W)
    advance(A)
    emit_tab(A, "Q", TABC, range(0, 36), 6)
    A("s_mov_b32 s%d, s%d\ns_mov_b32 s%d, s%d" % (P_QKV, S_LO, P_QKV + 1, S_CE))
    next_F(A, S_W)
    A("s_mul_i32 s%d, s%d, 1152\ns_mul_i32 s%d, s%d, %d\ns_add_u32 s%d, s%d, s%d" % (S_T0, S_J, S_T1, S_R, 18 * 9216, S_T0, S_T0, S_T1))
    A("s_lshl_b32 s%d, s%d, 6" % (S_T1, S_W))
    for k in range(6):
        A("v_add_u32 v40, s%d, v%d\nv_add_u32 v40, %d, v40" % (S_T1, V_LANE, 256 * k))
        A("v_mul_u32_u24 v41, 911, v40\nv_lshrrev_b32 v41, 16, v41")
        A("v_mul_u32_u24 v42, 72, v41\nv_sub_u32 v42, v40, v42")
        A("v_mul_u32_u24 v41, 9216, v41\nv_lshl_add_u32 v41, v42, 4, v41\nv_add_u32 v41, s%d, v41" % S_T0)
        A("v_cmp_le_u32 vcc, 1296, v40\nv_mov_b32 v42, %s\ns_nop 0\nv_cndmask_b32 v%d, v41, v42, vcc" % (OOB, 48 + k))
    LATE = ["buffer_load_dwordx4 v[168:171], v%d, s[%d:%d], 0 offen" % (48 + k, SRD_N, SRD_N + 3) for k in range(6)]
    dm = []
    for f in range(D):
        m0s, i1_, i2_ = dma_instrs("C", TABC + f, f)
        dm.append(m0s + "\ns_nop 0\n" + i1_ + "\n" + i2_)
    A("v_mov_b32 v24, 0\nv_mov_b32 v25, 0\nv_mov_b32 v26, 0\nv_mov_b32 v27, 0")
    A("s_lshl_b32 s%d, s%d, 10\ns_add_u32 s%d, s%d, %d\nv_add_u32 v28, s%d, v%d" % (S_T1, S_W, S_T1, S_T1, QB, S_T1, V_L16))
    for i in range(9): A("ds_write_b128 v28, v[24:27] offset:%d" % (i * 4096))
    A("v_cmp_gt_u32 vcc, %d, v28\ns_and_saveexec_b64 s[0:1], vcc" % (STAT - 9 * 4096))
    A("ds_write_b128 v28, v[24:27] offset:%d\ns_mov_b64 exec, s[0:1]" % (9 * 4096))
    A("s_lshr_b32 s%d, s%d, 1\ns_mul_i32 s%d, s%d, %d\ns_add_u32 s%d, s%d, %d" % (S_T0, S_W, S_T0, S_T0, 72 * 512, S_T0, S_T0, HB))
    A("s_and_b32 s%d, s%d, 1\ns_lshl_b32 s%d, s%d, 4" % (S_T1, S_W, S_T1, S_T1))
    A("v_lshrrev_b32 v29, 2, v%d\nv_add_u32 v29, s%d, v29" % (V_LANE, S_T1))
    A("v_and_b32 v30, 3, v%d\nv_lshlrev_b32 v31, 1, v30\nv_xor_b32 v31, v29, v31\nv_lshlrev_b32 v31, 4, v31" % V_LANE)
    A("v_lshl_add_u32 v28, v30, 9, v31\nv_add_u32 v28, s%d, v28" % S_T0)
    A("v_and_b32 v29, 31, v%d\nv_lshrrev_b32 v30, 5, v%d" % (V_LANE, V_LANE))
    A("v_lshlrev_b32 v31, 1, v30\nv_xor_b32 v31, v29, v31")
    A("v_lshlrev_b32 v32, 4, v31\nv_lshl_add_u32 v32, v30, 9, v32\nv_add_u32 v%d, %d, v32" % (TMP, HB))
    A("v_xor_b32 v%d, 64, v%d" % (TMP + 1, TMP))
    A("v_add_u32 v%d, %d, v%d\nv_add_u32 v%d, %d, v%d" % (TMP + 2, 72 * 512, TMP, TMP + 3, 72 * 512, TMP + 1))
    A("s_mov_b32 s%d, 0x3f803f80\ns_mov_b32 s%d, 0x00003f80\ns_mov_b32 s%d, 0x3f800000" % (S_T0, S_T2, S_T3))
    A("v_mov_b32 v24, 0\nv_mov_b32 v25, 0\nv_mov_b32 v26, 0\nv_mov_b32 v27, 0")
    A("s_waitcnt vmcnt(18)")
    for s in dm: A(s)
    A("s_waitcnt vmcnt(%d)" % (2 * D))
    stamp(A, 1)
    if STAMPS: A("s_mov_b32 s%d, 0x3f803f80" % S_T0)
    lq = list(LATE)
    for i in range(72):
        A("v_dot2_f32_bf16 v%d, v%d, s%d, v%d" % (24 + i % 4, XRQ(i // 4) + i % 4, S_T0, 24 + i % 4))
    A("s_nop 3\nv_add_f32 v24, v24, v25\nv_add_f32 v26, v26, v27\ns_nop 0\nv_add_f32 v24, v24, v26\ns_nop 1")
    A("v_add_f32_dpp v24, v24, v24 quad_perm:[1,0,3,2] row_mask:0xf bank_mask:0xf\ns_nop 1")
    A("v_add_f32_dpp v24, v24, v24 quad_perm:[2,3,0,1] row_mask:0xf bank_mask:0xf")
    A("v_mul_f32 v24, 0x%08x, v24" % f2u(1.0 / 576))
    A("v_cvt_pk_bf16_f32 v25, v24, v24\nv_lshlrev_b32 v25, 16, v25")
    A("v_sub_f32 v%d, v24, v25" % (TMP + 4))
    A("v_xor_b32 v25, 0x80000000, v25")
    NP = 8
    for i in range(72 + 4):
        if i < 72:
            t = 32 + 2 * (i % NP); x = XRQ(i // 4) + i % 4
            A("v_dot2_f32_bf16 v%d, v%d, s%d, v25\nv_dot2_f32_bf16 v%d, v%d, s%d, v25" % (t, x, S_T2, t + 1, x, S_T3))
        j = i - 4
        if j >= 0:
            t = 32 + 2 * (j % NP); x = XRQ(j // 4) + j % 4
            A("v_cvt_pk_bf16_f32 v%d, v%d, v%d" % (x, t, t + 1))
            if j % 4 == 3: A("ds_write_b128 v28, v[%d:%d] offset:%d" % (XRQ(j // 4), XRQ(j // 4) + 3, (j // 4) * 2048))
            if j % 12 == 1 and lq: A(lq.pop(0))
    A("v_mov_b32 v21, 0\nbuffer_load_dword v174, v21, s[24:27], 0 offen sc1")
    A("s_waitcnt lgkmcnt(0)\ns_barrier")
    stamp(A, 2)
    for t in range(2):
        for rg in range(2): A(xfrag_read(t, rg))
    assert not lq
    A("s_waitcnt vmcnt(%d)" % (2 * (D - LAF) + 6 + 1))
    first_tr_F(A)
    stamp(A, 3)


def gen_kv_publish(A):
    h = S_W
    D1 = ACC; D2 = ACC + 16
    AF = TMP; BF = TMP + 16; O1 = TMP + 32
    A("s_and_b32 s%d, s%d, 1" % (S_T0, h))
    A("s_mul_i32 s%d, s%d, 36\ns_lshl_b32 s%d, s%d, 2\ns_sub_u32 s%d, s%d, s%d\ns_add_u32 s%d, s%d, %d" % (S_T1, h, S_T2, S_T0, S_T1, S_T1, S_T2, S_T1, S_T1, QB))
    A("v_lshrrev_b32 v21, 5, v%d\nv_lshlrev_b32 v21, 3, v21" % V_LANE)
    A("v_bfe_u32 v22, v%d, 2, 2\nv_add_u32 v21, v21, v22\nv_mul_u32_u24 v21, %d, v21" % (V_LANE, QS))
    A("v_bfe_u32 v22, v%d, 4, 1\nv_lshl_add_u32 v21, v22, 5, v21" % V_LANE)
    A("v_and_b32 v22, 3, v%d\nv_lshl_add_u32 v21, v22, 3, v21\nv_add_u32 v21, s%d, v21" % (V_LANE, S_T1))
    for ks in range(4):
        for half in range(2):
            off = (16 * ks + 4 * half) * QS
            A("ds_read_b64_tr_b16 v[%d:%d], v21 offset:%d" % (AF + 4 * ks + 2 * half, AF + 4 * ks + 2 * half + 1, off))
            A("ds_read_b64_tr_b16 v[%d:%d], v21 offset:%d" % (BF + 4 * ks + 2 * half, BF + 4 * ks + 2 * half + 1, off + 144))
    for i in range(4): A("v_mov_b32 v%d, 0x3f803f80" % (O1 + i))
    A("s_lshl_b32 s%d, s%d, 1" % (S_T2, S_T0))
    A("v_and_b32 v21, 31, v%d\nv_subrev_u32 v22, s%d, v21" % (V_LANE, S_T2))
    A("v_cmp_eq_u32 vcc, 31, v21\nv_mov_b32 v23, 18\ns_nop 0\nv_cndmask_b32 v22, v22, v23, vcc")
    A("s_mov_b64 s[%d:%d], vcc" % (S_LO, S_LO + 1))
    A("v_cmp_gt_u32 vcc, 18, v22\ns_or_b64 vcc, vcc, s[%d:%d]" % (S_LO, S_LO + 1))
    A("v_lshrrev_b32 v23, 5, v%d\nv_mul_u32_u24 v23, 19, v23\nv_add_u32 v22, v22, v23\nv_lshlrev_b32 v22, 4, v22" % V_LANE)
    A("v_mov_b32 v23, %s\nv_cndmask_b32 v22, v23, v22, vcc" % OOB)
    A("s_lshl_b32 s%d, s%d, 2\ns_add_u32 s%d, s%d, s%d" % (S_T1, S_J, S_T1, S_T1, h))
    A("s_lshl_b32 s%d, s%d, 5\ns_add_u32 s%d, s%d, s%d" % (S_T3, S_T1, S_T3, S_T3, S_R))
    A("s_lshl_b32 s%d, s%d, 11\ns_add_u32 s%d, s%d, %d" % (S_T1, S_T3, S_T1, S_T1, WS_KVP))
    A("s_lshl_b32 s%d, s%d, 2\ns_add_u32 s%d, s%d, %d" % (S_T3, S_T3, S_T3, S_T3, WS_F1))
    A("s_waitcnt lgkmcnt(0)")
    for ks in range(4):
        c1 = "0" if ks == 0 else "v[%d:%d]" % (D1, D1 + 15)
        c2 = "0" if ks == 0 else "v[%d:%d]" % (D2, D2 + 15)
        A("v_mfma_f32_32x32x16_bf16 v[%d:%d], v[%d:%d], v[%d:%d], %s" % (D1, D1 + 15, AF + 4 * ks, AF + 4 * ks + 3, BF + 4 * ks, BF + 4 * ks + 3, c1))
        A("v_mfma_f32_32x32x16_bf16 v[%d:%d], v[%d:%d], v[%d:%d], %s" % (D2, D2 + 15, AF + 4 * ks, AF + 4 * ks + 3, O1, O1 + 3, c2))
    A("s_nop 15\ns_nop 3")
    for q in range(12): A("v_cndmask_b32_e64 v%d, v%d, v%d, s[%d:%d]" % (D1 + q, D1 + q, D2 + q, S_LO, S_LO + 1))
    for quad in range(3):
        A("buffer_store_dwordx4 v[%d:%d], v22, s[20:23], s%d offen offset:%d sc1" % (D1 + 4 * quad, D1 + 4 * quad + 3, S_T1, quad * 608))
    A("s_mov_b32 s%d, s%d" % (S_GOFF, S_T3))

def flag_op(sreg, va=21, vb=22):
    return Op("v_mov_b32 v%d, s%d\nv_mov_b32 v%d, 0\nv_cmp_eq_u32 vcc, 0, v%d\ns_and_saveexec_b64 s[0:1], vcc\nbuffer_store_dword v%d, v%d, s[20:23], s%d offen sc1\ns_mov_b64 exec, s[0:1]" % (va, S_NONCE, vb, V_LANE, va, vb, sreg), "vmem", cost=3)

SLOW = []
def check_op(label, vdat, vaddr, s_off, nlanes, extra_mask=None):
    SLOW.append((label, vdat, vaddr, s_off, nlanes))
    txt = "v_cmp_ne_u32 vcc, s%d, v%d\ns_and_b32 vcc_lo, vcc_lo, 0x%x\ns_mov_b32 vcc_hi, 0\ns_cbranch_vccnz %s_slow\n%s_ret:" % (S_NONCE, vdat, (1 << nlanes) - 1, label, label)
    return Op(txt, "salu", cost=3)
def emit_slow(A):
    for label, vdat, vaddr, s_off, nlanes in SLOW:
        A("%s_slow:" % label)
        A("s_mov_b32 s%d, 0" % S_T2)
        A("%s_loop:" % label)
        A("buffer_load_dword v%d, v%d, s[20:23], s%d offen sc1" % (vdat, vaddr, s_off))
        A("s_add_u32 s%d, s%d, 1\ns_waitcnt vmcnt(0)" % (S_T2, S_T2))
        A("v_cmp_ne_u32 vcc, s%d, v%d\ns_and_b32 vcc_lo, vcc_lo, 0x%x\ns_mov_b32 vcc_hi, 0" % (S_NONCE, vdat, (1 << nlanes) - 1))
        A("s_cbranch_vccz %s_ret" % label)
        A("s_cmp_gt_u32 s%d, %d\ns_cbranch_scc1 %s_ret" % (S_T2, SPIN, label))
        A("s_branch %s_loop" % label)

def gen_kv_reduce_old(A):
    A("s_cmp_ge_u32 s%d, 2\ns_cbranch_scc1 L_red_done" % S_W)
    A("s_lshr_b32 s%d, s%d, 3" % (S_T0, S_R))
    A("s_lshl_b32 s%d, s%d, 2\ns_add_u32 s%d, s%d, s%d" % (S_T1, S_J, S_T1, S_T1, S_T0))
    A("s_lshl_b32 s%d, s%d, 7\ns_add_u32 s%d, s%d, %d" % (S_T3, S_T1, S_T3, S_T3, WS_F1))
    poll_flags(A, "L_p1", S_T3, 32)
    A("s_and_b32 s%d, s%d, 7\ns_lshl_b32 s%d, s%d, 1\ns_add_u32 s%d, s%d, s%d" % (S_T0, S_R, S_T0, S_T0, S_T0, S_T0, S_W))
    A("v_lshrrev_b32 v21, 3, v%d\nv_lshlrev_b32 v21, 11, v21" % V_LANE)
    A("v_and_b32 v22, 7, v%d\nv_lshl_add_u32 v21, v22, 4, v21" % V_LANE)
    A("s_lshl_b32 s%d, s%d, 16\ns_add_u32 s%d, s%d, %d" % (S_T2, S_T1, S_T2, S_T2, WS_KVP))
    A("s_lshl_b32 s%d, s%d, 7\ns_add_u32 s%d, s%d, s%d" % (S_T3, S_T0, S_T2, S_T2, S_T3))
    R = ACC
    for k in range(4):
        A("buffer_load_dwordx4 v[%d:%d], v21, s[20:23], s%d offen sc1" % (R + 4 * k, R + 4 * k + 3, S_T2))
        if k < 3: A("s_add_u32 s%d, s%d, %d" % (S_T2, S_T2, 8 * 2048))
    A("s_waitcnt vmcnt(0)")
    for i in range(4):
        A("v_add_f32 v%d, v%d, v%d\nv_add_f32 v%d, v%d, v%d" % (R + i, R + i, R + 4 + i, R + 8 + i, R + 8 + i, R + 12 + i))
    for i in range(4): A("v_add_f32 v%d, v%d, v%d" % (R + i, R + i, R + 8 + i))
    A("s_nop 1")
    for i in range(4): A("v_add_f32_dpp v%d, v%d, v%d row_ror:8 row_mask:0xf bank_mask:0xf" % (R + i, R + i, R + i))
    for i in range(4): A("v_mov_b32 v%d, v%d" % (R + 4 + i, R + i))
    A("s_nop 1")
    for i in range(4): A("v_permlane16_swap_b32 v%d, v%d" % (R + i, R + 4 + i))
    A("s_nop 1")
    for i in range(4): A("v_add_f32 v%d, v%d, v%d" % (R + i, R + i, R + 4 + i))
    for i in range(4): A("v_mov_b32 v%d, v%d" % (R + 4 + i, R + i))
    A("s_nop 1")
    for i in range(4): A("v_permlane32_swap_b32 v%d, v%d" % (R + i, R + 4 + i))
    A("s_nop 1")
    for i in range(4): A("v_add_f32 v%d, v%d, v%d" % (R + i, R + i, R + 4 + i))
    A("s_lshl_b32 s%d, s%d, 11\ns_lshl_b32 s%d, s%d, 7\ns_add_u32 s%d, s%d, s%d\ns_add_u32 s%d, s%d, %d" % (S_T2, S_T1, S_T3, S_T0, S_T2, S_T2, S_T3, S_T2, S_T2, WS_KVT))
    A("v_cmp_gt_u32 vcc, 8, v%d\ns_and_saveexec_b64 s[0:1], vcc" % V_LANE)
    A("buffer_store_dwordx4 v[%d:%d], v%d, s[20:23], s%d offen sc1" % (R, R + 3, V_L16, S_T2))
    A("s_mov_b64 exec, s[0:1]")
    A("s_lshl_b32 s%d, s%d, 7\ns_lshl_b32 s%d, s%d, 2\ns_add_u32 s%d, s%d, s%d\ns_add_u32 s%d, s%d, %d" % (S_T2, S_T1, S_T3, S_T0, S_T2, S_T2, S_T3, S_T2, S_T2, WS_F2))
    A("s_waitcnt vmcnt(0)")
    set_flag(A, S_T2)
    A("L_red_done:")

def red_setup(A, w):
    A("s_lshr_b32 s%d, s%d, 3" % (S_T0, S_R))
    A("s_lshl_b32 s%d, s%d, 2\ns_add_u32 s%d, s%d, s%d" % (S_T1, S_J, S_T1, S_T1, S_T0))
    A("s_lshl_b32 s%d, s%d, 7\ns_add_u32 s%d, s%d, %d" % (S_LO, S_T1, S_LO, S_LO, WS_F1))
    A("s_and_b32 s%d, s%d, 7\ns_lshl_b32 s%d, s%d, 1\ns_add_u32 s%d, s%d, %d" % (S_T0, S_R, S_T0, S_T0, S_T0, S_T0, w))
    A("s_lshl_b32 s%d, s%d, 16\ns_lshl_b32 s%d, s%d, 7\ns_add_u32 s%d, s%d, s%d\ns_add_u32 s%d, s%d, %d" % (S_CE, S_T1, S_T2, S_T0, S_CE, S_CE, S_T2, S_CE, S_CE, WS_KVP))
    A("s_lshl_b32 s%d, s%d, 11\ns_add_u32 s%d, s%d, s%d\ns_add_u32 s%d, s%d, %d" % (S_C6, S_T1, S_C6, S_C6, S_T2, S_C6, S_C6, WS_KVT))
    A("s_lshl_b32 s%d, s%d, 7\ns_lshl_b32 s%d, s%d, 2\ns_add_u32 s%d, s%d, s%d\ns_add_u32 s%d, s%d, %d" % (S_U8, S_T1, S_T2, S_T0, S_U8, S_U8, S_T2, S_U8, S_U8, WS_F2))
    A("v_lshlrev_b32 v168, 2, v%d" % V_LANE)
def red_loads(A, R):
    A("v_lshrrev_b32 v21, 3, v%d\nv_lshlrev_b32 v21, 11, v21\nv_and_b32 v22, 7, v%d\nv_lshl_add_u32 v21, v22, 4, v21" % (V_LANE, V_LANE))
    for k in range(4):
        A("buffer_load_dwordx4 v[%d:%d], v21, s[20:23], s%d offen sc1" % (R + 4 * k, R + 4 * k + 3, S_CE))
        if k < 3: A("s_add_u32 s%d, s%d, %d" % (S_CE, S_CE, 8 * 2048))
def red_finish(A, R):
    for i in range(4): A("v_add_f32 v%d, v%d, v%d\nv_add_f32 v%d, v%d, v%d" % (R + i, R + i, R + 4 + i, R + 8 + i, R + 8 + i, R + 12 + i))
    for i in range(4): A("v_add_f32 v%d, v%d, v%d" % (R + i, R + i, R + 8 + i))
    A("s_nop 1")
    for i in range(4): A("v_add_f32_dpp v%d, v%d, v%d row_ror:8 row_mask:0xf bank_mask:0xf" % (R + i, R + i, R + i))
    for i in range(4): A("v_mov_b32 v%d, v%d" % (R + 4 + i, R + i))
    A("s_nop 1")
    for i in range(4): A("v_permlane16_swap_b32 v%d, v%d" % (R + i, R + 4 + i))
    A("s_nop 1")
    for i in range(4): A("v_add_f32 v%d, v%d, v%d" % (R + i, R + i, R + 4 + i))
    for i in range(4): A("v_mov_b32 v%d, v%d" % (R + 4 + i, R + i))
    A("s_nop 1")
    for i in range(4): A("v_permlane32_swap_b32 v%d, v%d" % (R + i, R + 4 + i))
    A("s_nop 1")
    for i in range(4): A("v_add_f32 v%d, v%d, v%d" % (R + i, R + i, R + 4 + i))
    A("v_cmp_gt_u32 vcc, 8, v%d\ns_and_saveexec_b64 s[0:1], vcc" % V_LANE)
    A("buffer_store_dwordx4 v[%d:%d], v%d, s[20:23], s%d offen sc1" % (R, R + 3, V_L16, S_C6))
    A("s_mov_b64 exec, s[0:1]")

def o_setup(A):
    h = S_W; E = EPI
    A("s_lshl_b32 s%d, s%d, 2\ns_add_u32 s%d, s%d, s%d" % (S_T1, S_J, S_T1, S_T1, h))
    A("s_lshl_b32 s%d, s%d, 7\ns_add_u32 s%d, s%d, %d" % (S_LO, S_T1, S_LO, S_LO, WS_F2))
    A("s_lshl_b32 s%d, s%d, 11\ns_add_u32 s%d, s%d, %d" % (S_CE, S_T1, S_CE, S_CE, WS_KVT))
    A("v_lshlrev_b32 v%d, 2, v%d" % (E, V_LANE))
    A("v_and_b32 v21, 31, v%d" % V_LANE)
    A("v_cmp_eq_u32 vcc, 22, v21\nv_mov_b32 v22, 18\ns_nop 0\nv_cndmask_b32 v21, v21, v22, vcc")
    A("v_cmp_ge_u32 vcc, 18, v21\nv_lshrrev_b32 v23, 5, v%d\nv_lshlrev_b32 v21, 4, v21" % V_LANE)
    A("v_mul_u32_u24 v22, 608, v23\nv_add_u32 v22, v21, v22\nv_mov_b32 v%d, %s" % (E + 1, OOB))
    A("v_cndmask_b32 v%d, v%d, v22, vcc\nv_cndmask_b32 v%d, v%d, v21, vcc" % (E + 2, E + 1, E + 3, E + 1))
    A("s_and_b32 s%d, s%d, 1" % (S_T0, h))
    A("s_mul_i32 s%d, s%d, 36\ns_lshl_b32 s%d, s%d, 2\ns_sub_u32 s%d, s%d, s%d\ns_add_u32 s%d, s%d, %d" % (S_T1, h, S_T3, S_T0, S_T1, S_T1, S_T3, S_T1, S_T1, QB + 288))
    A("v_and_b32 v22, 31, v%d\nv_mul_u32_u24 v21, %d, v22\nv_lshl_add_u32 v21, v23, 4, v21\nv_add_u32 v%d, s%d, v21" % (V_LANE, QS, E + 24, S_T1))
    A("s_mul_i32 s%d, s%d, 36\ns_add_u32 s%d, s%d, %d" % (S_T1, h, S_T1, S_T1, OB))
    A("v_mul_u32_u24 v21, %d, v22\nv_lshl_add_u32 v21, v23, 3, v21\nv_add_u32 v%d, s%d, v21" % (OS, E + 25, S_T1))
    A("v_cmp_eq_u32 vcc, 0, v23\ns_mov_b64 s[%d:%d], vcc" % (S_U8, S_U8 + 1))
    A("s_cmp_eq_u32 s%d, 0\ns_cselect_b64 s[%d:%d], 0, vcc" % (S_T0, S_C6, S_C6 + 1))
def o_hook(placed):
    E = EPI; KV = E + 4; AK = E + 16; DO = E + 32; BQ = HOLDP[:4]; T = E + 26
    P = lambda t, k, ops: placed.setdefault((t, k), []).extend(ops)
    P(8, 2, [Op("buffer_load_dword v%d, v%d, s[20:23], s%d offen sc1" % (E + 1, E, S_LO), "vmem")])
    P(16, 2, [check_op("L_c2", E + 1, E, S_LO, 16)])
    P(16, 3, [Op("buffer_load_dwordx4 v[%d:%d], v%d, s[20:23], s%d offen sc1" % (KV, KV + 3, E + 2, S_CE), "vmem"),
              Op("buffer_load_dwordx4 v[%d:%d], v%d, s[20:23], s%d offen offset:304 sc1" % (KV + 4, KV + 7, E + 2, S_CE), "vmem"),
              Op("buffer_load_dwordx4 v[%d:%d], v%d, s[20:23], s%d offen offset:1216 sc1" % (KV + 8, KV + 11, E + 3, S_CE), "vmem")])
    n = 0
    for rg in range(2):
        for t in range(2):
            b = BQ[rg * 2 + t]; off = rg * 32 * QS + t * 32
            P(18 + n, 2, [Op("ds_read_b64 v[%d:%d], v%d offset:%d" % (b, b + 1, E + 24, off), "lds"), Op("ds_read_b64 v[%d:%d], v%d offset:%d" % (b + 2, b + 3, E + 24, off + 8), "lds")]); n += 1
    m_hs = "s[%d:%d]" % (S_C6, S_C6 + 1); m_h0 = "s[%d:%d]" % (S_U8, S_U8 + 1)
    ops = []
    for jj in range(2): ops.append(Op("v_cndmask_b32_e64 v%d, v%d, 0, %s" % (KV + jj, KV + jj, m_hs)))
    for jj in range(2): ops.append(Op("v_cndmask_b32_e64 v%d, 0, v%d, %s" % (KV + 8 + jj, KV + 8 + jj, m_h0)))
    for jj in range(2, 4): ops.append(Op("v_cndmask_b32_e64 v%d, 0, v%d, %s" % (KV + 8 + jj, KV + 8 + jj, m_hs)))
    P(24, 2, ops)
    ops = []
    for p in range(4): ops.append(Op("v_cvt_pk_bf16_f32 v%d, v%d, v%d" % (AK + p, KV + 2 * p, KV + 2 * p + 1)))
    P(24, 3, ops)
    P(25, 2, [Op("v_cvt_pk_bf16_f32 v%d, v%d, v%d" % (AK + 4, KV + 8, KV + 9)), Op("v_cvt_pk_bf16_f32 v%d, v%d, v%d" % (AK + 5, KV + 10, KV + 11)), Op("v_mov_b32 v%d, 0" % (AK + 6)), Op("v_mov_b32 v%d, 0" % (AK + 7))])
    for rg in range(2):
        P(26, 1 + rg, [Op("v_mfma_f32_32x32x16_bf16 v[%d:%d], v[%d:%d], v[%d:%d], 0" % (DO + 16 * rg, DO + 16 * rg + 15, AK, AK + 3, BQ[rg * 2], BQ[rg * 2] + 3))])
        P(27, 1 + rg, [Op("v_mfma_f32_32x32x16_bf16 v[%d:%d], v[%d:%d], v[%d:%d], v[%d:%d]" % (DO + 16 * rg, DO + 16 * rg + 15, AK + 4, AK + 7, BQ[rg * 2 + 1], BQ[rg * 2 + 1] + 3, DO + 16 * rg, DO + 16 * rg + 15))])
    for rg in range(2):
        d = DO + 16 * rg; t0 = 29 + rg
        P(t0, 0, [Op("v_add_f32 v%d, 0x358637bd, v%d" % (T, d + 10))])
        P(t0, 1, [Op("v_rcp_f32 v%d, v%d" % (T, T), "trans")])
        P(t0, 2, [Op("v_mul_f32 v%d, v%d, v%d" % (d + q, d + q, T)) for q in range(6)])
        P(t0, 3, [Op("v_mul_f32 v%d, v%d, v%d" % (d + q, d + q, T)) for q in range(6, 10)])
        P(t0 + 1, 0, [Op("v_cvt_pk_bf16_f32 v%d, v%d, v%d" % (d + p, d + 2 * p, d + 2 * p + 1)) for p in range(2)])
        P(t0 + 1, 1, [Op("v_cvt_pk_bf16_f32 v%d, v%d, v%d" % (d + p, d + 2 * p, d + 2 * p + 1)) for p in range(2, 5)])
        P(t0 + 1, 2, [Op("ds_write_b32 v%d, v%d offset:%d" % (E + 25, d + p, rg * 32 * OS + (p // 2) * 16 + (p % 2) * 4), "lds") for p in range(4)])
        P(t0 + 1, 3, [Op("s_mov_b64 exec, %s\nds_write_b32 v%d, v%d offset:%d\ns_mov_b64 exec, -1" % (m_h0, E + 25, d + 4, rg * 32 * OS + 32), "lds")])
    P(33, 3, [Op("s_waitcnt lgkmcnt(0)\ns_barrier", "salu")])

def gen_attn_o_old(A):
    h = S_W
    T = ACC + 16; KV = ACC
    A("s_lshl_b32 s%d, s%d, 2\ns_add_u32 s%d, s%d, s%d" % (S_T1, S_J, S_T1, S_T1, h))
    A("s_lshl_b32 s%d, s%d, 7\ns_add_u32 s%d, s%d, %d" % (S_T3, S_T1, S_T3, S_T3, WS_F2))
    poll_flags(A, "L_p2", S_T3, 16)
    A("s_and_b32 s%d, s%d, 1" % (S_T0, h))
    A("v_and_b32 v21, 31, v%d" % V_LANE)
    A("v_cmp_eq_u32 vcc, 22, v21\nv_mov_b32 v22, 18\ns_nop 0\nv_cndmask_b32 v21, v21, v22, vcc")
    A("v_cmp_ge_u32 vcc, 18, v21\ns_mov_b64 s[%d:%d], vcc" % (S_LO, S_LO + 1))
    A("v_lshrrev_b32 v23, 5, v%d" % V_LANE)
    A("v_lshlrev_b32 v21, 4, v21")
    A("v_mul_u32_u24 v22, 608, v23\nv_add_u32 v22, v21, v22")
    A("v_mov_b32 v24, %s" % OOB)
    A("v_cndmask_b32_e64 v22, v24, v22, s[%d:%d]\nv_cndmask_b32_e64 v21, v24, v21, s[%d:%d]" % (S_LO, S_LO + 1, S_LO, S_LO + 1))
    A("s_lshl_b32 s%d, s%d, 11\ns_add_u32 s%d, s%d, %d" % (S_T2, S_T1, S_T2, S_T2, WS_KVT))
    KV = ACC + 4
    A("buffer_load_dwordx4 v[%d:%d], v22, s[20:23], s%d offen sc1" % (KV, KV + 3, S_T2))
    A("buffer_load_dwordx4 v[%d:%d], v22, s[20:23], s%d offen offset:304 sc1" % (KV + 4, KV + 7, S_T2))
    A("buffer_load_dwordx4 v[%d:%d], v21, s[20:23], s%d offen offset:1216 sc1" % (KV + 8, KV + 11, S_T2))
    A("s_mul_i32 s%d, s%d, 36\ns_lshl_b32 s%d, s%d, 2\ns_sub_u32 s%d, s%d, s%d\ns_add_u32 s%d, s%d, %d" % (S_T1, h, S_T3, S_T0, S_T1, S_T1, S_T3, S_T1, S_T1, QB + 288))
    A("v_and_b32 v22, 31, v%d\nv_mul_u32_u24 v22, %d, v22" % (V_LANE, QS))
    A("v_lshl_add_u32 v22, v23, 4, v22\nv_add_u32 v22, s%d, v22" % S_T1)
    BQ = T
    for rg in range(2):
        for t in range(2):
            b = BQ + 4 * (rg * 2 + t); off = rg * 32 * QS + t * 32
            A("ds_read_b64 v[%d:%d], v22 offset:%d\nds_read_b64 v[%d:%d], v22 offset:%d" % (b, b + 1, off, b + 2, b + 3, off + 8))
    A("v_cmp_eq_u32 vcc, 0, v23\ns_mov_b64 s[%d:%d], vcc" % (S_LO, S_LO + 1))
    A("s_cmp_eq_u32 s%d, 0\ns_cselect_b64 s[%d:%d], 0, vcc" % (S_T0, S_C6, S_C6 + 1))
    A("s_waitcnt vmcnt(0)")
    for jj in range(2): A("v_cndmask_b32_e64 v%d, v%d, 0, s[%d:%d]" % (KV + jj, KV + jj, S_C6, S_C6 + 1))
    for jj in range(2): A("v_cndmask_b32_e64 v%d, 0, v%d, s[%d:%d]" % (KV + 8 + jj, KV + 8 + jj, S_LO, S_LO + 1))
    for jj in range(2, 4): A("v_cndmask_b32_e64 v%d, 0, v%d, s[%d:%d]" % (KV + 8 + jj, KV + 8 + jj, S_C6, S_C6 + 1))
    AK = T + 16
    for p in range(4): A("v_cvt_pk_bf16_f32 v%d, v%d, v%d" % (AK + p, KV + 2 * p, KV + 2 * p + 1))
    for p in range(2): A("v_cvt_pk_bf16_f32 v%d, v%d, v%d" % (AK + 4 + p, KV + 8 + 2 * p, KV + 9 + 2 * p))
    A("v_mov_b32 v%d, 0\nv_mov_b32 v%d, 0" % (AK + 6, AK + 7))
    A("s_waitcnt lgkmcnt(0)\ns_nop 1")
    DO = EPI
    for rg in range(2): A("v_mfma_f32_32x32x16_bf16 v[%d:%d], v[%d:%d], v[%d:%d], 0" % (DO + 16 * rg, DO + 16 * rg + 15, AK, AK + 3, BQ + 8 * rg, BQ + 8 * rg + 3))
    for rg in range(2): A("v_mfma_f32_32x32x16_bf16 v[%d:%d], v[%d:%d], v[%d:%d], v[%d:%d]" % (DO + 16 * rg, DO + 16 * rg + 15, AK + 4, AK + 7, BQ + 8 * rg + 4, BQ + 8 * rg + 7, DO + 16 * rg, DO + 16 * rg + 15))
    A("s_mul_i32 s%d, s%d, 36\ns_add_u32 s%d, s%d, %d" % (S_T1, h, S_T1, S_T1, OB))
    A("v_and_b32 v22, 31, v%d\nv_mul_u32_u24 v22, %d, v22" % (V_LANE, OS))
    A("v_lshl_add_u32 v22, v23, 3, v22\nv_add_u32 v22, s%d, v22" % S_T1)
    A("s_nop 15")
    for rg in range(2):
        d = DO + 16 * rg
        A("v_add_f32 v%d, 0x358637bd, v%d\nv_rcp_f32 v%d, v%d\ns_nop 0" % (T + 24, d + 10, T + 24, T + 24))
        for q in range(10): A("v_mul_f32 v%d, v%d, v%d" % (d + q, d + q, T + 24))
        for p in range(5): A("v_cvt_pk_bf16_f32 v%d, v%d, v%d" % (T + 26 + p, d + 2 * p, d + 2 * p + 1))
        for p in range(4): A("ds_write_b32 v22, v%d offset:%d" % (T + 26 + p, rg * 32 * OS + (p // 2) * 16 + (p % 2) * 4))
        A("s_mov_b64 exec, s[%d:%d]\nds_write_b32 v22, v%d offset:%d\ns_mov_b64 exec, -1" % (S_LO, S_LO + 1, T + 30, rg * 32 * OS + 32))

def xchg_write(A, w, base_expr_sreg):
    A("v_add_u32 v21, s%d, v%d" % (S_RING, V_L16))
    idx = 0
    for ai in range(4):
        if ai == w: continue
        for qd in range(4):
            b = ACC + 16 * ai + 4 * qd
            A("ds_write_b128 v21, v[%d:%d] offset:%d" % (b, b + 3, idx * 4096 + qd * 1024))
        idx += 1
def xchg_read_sum(A, w, T):
    A("v_add_u32 v21, %d, v%d" % (RING, V_L16))
    n = 0
    for src in range(4):
        if src == w: continue
        idx = w if w < src else w - 1
        for qd in range(4):
            b = T + 16 * n + 4 * qd
            A("ds_read_b128 v[%d:%d], v21 offset:%d" % (b, b + 3, src * RING_W + idx * 4096 + qd * 1024))
        n += 1
    A("s_waitcnt lgkmcnt(8)")
    for i in range(16): A("v_add_f32 v%d, v%d, v%d" % (ACC + 16 * w + i, ACC + 16 * w + i, T + i))
    A("s_waitcnt lgkmcnt(4)")
    for i in range(16): A("v_add_f32 v%d, v%d, v%d" % (ACC + 16 * w + i, ACC + 16 * w + i, T + 16 + i))
    A("s_waitcnt lgkmcnt(0)")
    for i in range(16): A("v_add_f32 v%d, v%d, v%d" % (ACC + 16 * w + i, ACC + 16 * w + i, T + 32 + i))

def wave_switch(A, prefix):
    A("s_cmp_eq_u32 s%d, 1\ns_cbranch_scc1 %s1" % (S_W, prefix))
    A("s_cmp_eq_u32 s%d, 2\ns_cbranch_scc1 %s2" % (S_W, prefix))
    A("s_cmp_eq_u32 s%d, 3\ns_cbranch_scc1 %s3" % (S_W, prefix))

def gen_F(A):
    full_F(A, r1_ops())
    stamp(A, 4)
    A("s_lshl_b32 s%d, s%d, 3" % (S_U8, S_W))
    A("v_and_b32 v21, 31, v%d\nv_mul_u32_u24 v21, %d, v21" % (V_LANE, QS))
    A("v_lshrrev_b32 v22, 5, v%d\nv_lshl_add_u32 v21, v22, 3, v21\nv_add_u32 v%d, %d, v21" % (V_LANE, V_EP, QB))
    advance(A)
    emit_tab(A, "F", TABC, range(D, 36), 6)
    A("s_add_u32 s%d, s%d, 4" % (S_T3, S_W))
    next_F(A, S_T3)
    full_F(A, place(q_ops(), 0, 34))
    stamp(A, 5)
    q_flush(A)
    A("s_lshl_b32 s%d, s%d, 13\ns_add_u32 s%d, s%d, %d\nv_add_u32 v%d, s%d, v%d" % (S_T0, S_W, S_T0, S_T0, HB, V_EP, S_T0, V_L16))
    advance(A)
    gen_prefetch(A, "w2")
    A("s_mov_b32 s%d, 8" % S_T3)
    next_F(A, S_T3, kq=True)
    A("v_readfirstlane_b32 s%d, v174" % S_NONCE)
    A("s_mov_b32 s%d, 0" % S_T2)
    A("L_nz:")
    A("s_cmp_lg_u32 s%d, 0\ns_cbranch_scc1 L_nz_ok" % S_NONCE)
    A("s_add_u32 s%d, s%d, 1\ns_cmp_gt_u32 s%d, %d\ns_cbranch_scc1 L_nz_ok" % (S_T2, S_T2, S_T2, SPIN))
    A("v_mov_b32 v21, 0\nbuffer_load_dword v174, v21, s[24:27], 0 offen sc1\ns_waitcnt vmcnt(0)\nv_readfirstlane_b32 s%d, v174\ns_branch L_nz" % S_NONCE)
    A("L_nz_ok:")
    A("s_mov_b32 s24, s%d\ns_mov_b32 s25, s%d\ns_mov_b32 s26, %d" % (P_QKV, P_QKV + 1, SZ_X))
    A("s_waitcnt lgkmcnt(0)\ns_barrier")
    gen_kv_publish(A)
    stamp(A, 6)
    pl = place(silu_ops(), 0, 34)
    pl.setdefault((10, 3), []).append(flag_op(S_GOFF))
    full_F(A, pl)
    stamp(A, 7)
    silu_flush(A)
    advance(A)
    wave_switch(A, "L_sf")
    for w in range(4):
        A("L_sf%d:" % w)
        pl = {}
        if w < 2:
            red_setup(A, w)
            pl.setdefault((3, 2), []).append(Op("buffer_load_dword v169, v168, s[20:23], s%d offen sc1" % S_LO, "vmem"))
        short_F(A, w, pl)
        A("s_nop 15")
        xchg_write(A, w, None)
        DEAD = ACC + 16 * ((w + 1) % 4)
        DEAD2 = ACC + 16 * ((w + 2) % 4)
        if w < 2:
            A("s_waitcnt vmcnt(0)")
            A(check_op("L_c1_%d" % w, 169, 168, S_LO, 32).text)
            A("s_waitcnt lgkmcnt(0)")
            red_loads(A, DEAD)
        A("s_waitcnt lgkmcnt(0)\ns_barrier")
        xchg_read_sum(A, w, TMP)
        tile, rg = w >> 1, w & 1
        A("v_add_u32 v21, %d, v%d" % (HB + 8 * 8192 + tile * 4096 + rg * 1024, V_L16))
        for s in range(2):
            P = TMP + 4 * s
            for gq in range(2):
                emit_ops(A, silu_group(ACC + 16 * w + 8 * s + 4 * gq, rg, DEAD2 + 4 * (s * 2 + gq), P + 2 * gq))
            A("ds_write_b128 v21, v[%d:%d] offset:%d" % (P, P + 3, s * 2048))
        if w < 2:
            A("s_waitcnt vmcnt(0)")
            red_finish(A, DEAD)
        if w < 3: A("s_branch L_sf_done")
    A("L_sf_done:")
    stamp(A, 8)

def unit_of(A, dst, k):
    A("s_add_u32 s%d, s%d, s%d\ns_add_u32 s%d, s%d, %d\ns_and_b32 s%d, s%d, 7" % (dst, S_J, S_W, dst, dst, k, dst, dst))
    if k == 0:
        A("s_cmp_eq_u32 s%d, 0\ns_cselect_b32 s%d, 8, s%d" % (S_W, dst, dst))

def set_unit_store(A, s_u, sbase, sflag):
    A("s_mul_i32 s%d, s%d, 9\ns_add_u32 s%d, s%d, s%d\ns_lshl_b32 s%d, s%d, 13" % (sbase, S_WG, sbase, sbase, s_u, sbase, sbase))
    A("s_lshl_b32 s%d, s%d, 4\ns_add_u32 s%d, s%d, s%d\ns_lshl_b32 s%d, s%d, 5" % (sflag, S_R, sflag, sflag, s_u, sflag, sflag))
    A("s_lshl_b32 s%d, s%d, 2\ns_add_u32 s%d, s%d, s%d\ns_add_u32 s%d, s%d, %d" % (S_T1, S_J, sflag, sflag, S_T1, sflag, sflag, WS_FP))

def next_P2(A, s_nu):
    A("s_lshl_b32 s%d, s%d, 7" % (S_T1, s_nu))
    A("v_mul_u32_u24 v%d, 1152, v%d" % (V_NA, V_ROW8))
    A("v_add3_u32 v%d, v%d, v%d, s%d" % (V_NA, V_NA, V_SC16, S_T1))
    A("v_add_u32 v%d, %d, v%d" % (V_NB, 8 * 1152 - 1024, V_NA))
def adv2(A):
    A("v_mov_b32 v%d, v%d\nv_mov_b32 v%d, v%d" % (V_CA, V_NA, V_CB, V_NB))

def gen_P(A):
    A("s_waitcnt lgkmcnt(0)\ns_barrier")
    stamp(A, 9)
    A("s_mov_b32 s%d, s%d" % (S_GOFF if False else S_UNIT, S_U8))
    set_srd(A, SRD_N, P_W2, SZ_W2)
    set_srd(A, SRD_C, P_W2, SZ_W2)
    for s in range(41):
        if s < 36: A("s_add_u32 s%d, s%d, %d" % (TAB + s, S_W2B, kk_of(s) * 18432))
        else: A("s_add_u32 s%d, s%d, %d" % (TAB + s, S_WOB, (s - 36) * 18432))
    unit_of(A, S_T3, 0)
    next_P2(A, S_T3)
    for f in range(6):
        m0s, i1, i2, _ = pdma(SRD_N, V_NA, V_NB, TAB + f, f, None)
        A(m0s); A("s_nop 0"); A(i1); A(i2)
    adv2(A)
    A("v_add_u32 v21, %d, v%d\nv_add_u32 v22, %d, v%d" % (HB, V_L16, HB + 65536, V_L16))
    cnt = 0
    for s in range(20):
        kk = kk_of(s)
        for rg in range(2):
            off = (kk * 2 + rg) * 1024
            if off < 65536: A("ds_read_b128 %s, v21 offset:%d" % (bregS(s, rg), off))
            else: A("ds_read_b128 %s, v22 offset:%d" % (bregS(s, rg), off - 65536))
            cnt += 1
            if cnt % 12 == 0: A("s_waitcnt lgkmcnt(4)")
    A("s_cmp_ge_u32 s%d, 2\ns_cbranch_scc1 L_nof2" % S_W)
    A("s_waitcnt vmcnt(12)")
    A(flag_op(S_UNIT).text)
    A("L_nof2:")
    stamp(A, 11)
    A("s_lshl_b32 s%d, s%d, 13\ns_add_u32 s%d, s%d, %d" % (S_B2, S_W, S_B2, S_B2, HB))
    A("s_sub_u32 s%d, s%d, s%d" % (S_T0, S_B2, S_RING))
    A("v_add_u32 v%d, s%d, v%d\nv_add_u32 v%d, s%d, v%d" % (V_PA2, S_T0, V_PA, V_PB2, S_T0, V_PB))
    A("s_lshl_b32 s%d, s%d, 13\ns_add_u32 s%d, s%d, %d\nv_add_u32 v%d, s%d, v%d" % (S_T0, S_W, S_T0, S_T0, HB + 4 * 8192, V_EP, S_T0, V_L16))
    unit_of(A, S_T3, 4)
    next_P2(A, S_T3)
    o_setup_s(A)
    A("s_waitcnt vmcnt(10) lgkmcnt(0)")
    A("s_barrier")
    fr = pfrag(0, True)
    for which in range(2):
        for part in range(2): tr2(A, fr, 0, which, part)
    stamp(A, 13)
    pl = place(silu_ops_g(OJ, HOLDP), 0, 15)
    place(silu_flush64_ops(HOLDP), 16, 18, pl)
    pl.setdefault((18, 3), []).append(Op("s_waitcnt lgkmcnt(0)\ns_barrier\nv_add_u32 v%d, %d, v%d" % (V_HR, HB, V_L16), "salu"))
    for s in range(20, 36):
        pl.setdefault((s - 1, 0), [])[:0] = [Op("ds_read_b128 %s, v%d offset:%d" % (bregS(s, rg), V_HR, (kk_of(s) * 2 + rg) * 1024), "lds", cost=1) for rg in range(2)]
    o_hook2(pl)
    body_P1(A, pl)
    stamp(A, 14)
    unit_of(A, S_T3, 0)
    set_unit_store(A, S_T3, S_U8, S_GOFF)
    adv2(A)
    next_P2(A, S_J)
    A("s_mul_i32 s%d, s%d, %d\ns_add_u32 s%d, s%d, s%d" % (S_T0, S_W, 9 * 18432, S_T0, S_T0, S_W2B))
    for i in range(9): A("s_add_u32 s%d, s%d, %d" % (OT[i], S_T0, i * 18432))
    A("s_mul_i32 s%d, s%d, 18432\ns_add_u32 s%d, s%d, s%d" % (OT[9], S_W, OT[9], OT[9], S_WOB))
    A("s_add_u32 s%d, s%d, %d\ns_cmp_eq_u32 s%d, 3\ns_cselect_b32 s%d, s%d, %s" % (OT[10], S_WOB, 4 * 18432, S_W, OT[10], OT[10], OOB))
    A("s_sub_u32 s%d, s%d, s%d" % (S_T0, S_B2, S_RING))
    A("v_add_u32 v%d, s%d, v%d\nv_add_u32 v%d, s%d, v%d" % (V_TA2, S_T0, V_TA, V_TB2, S_T0, V_TB))
    A("s_barrier")
    pl = place(cvt_inplace_ops(), 1, 8)
    place(gstore_ops(lambda ai, half: EPI + 16 * ai + 8 * half, S_U8), 9, 20, pl)
    pl.setdefault((35, 3), []).append(flag_op(S_GOFF))
    body_P2(A, pl)
    stamp(A, 15)
    unit_of(A, S_T3, 4)
    set_unit_store(A, S_T3, S_UNIT, S_RHO)
    wave_switch(A, "L_sp")
    for w in range(4):
        A("L_sp%d:" % w)
        n = 11 if w == 3 else 10
        pl = place(cvt_inplace_ops(), 1, 3)
        place(gstore_ops(lambda ai, half: EPI + 16 * ai + 8 * half, S_UNIT), 2 + 2, 7, pl)
        body_P3(A, w, pl)
        A("s_nop 15")
        xchg_write(A, w, None)
        A("s_waitcnt lgkmcnt(0)\ns_barrier")
        A("s_waitcnt vmcnt(0)")
        A(flag_op(S_RHO).text)
        xchg_read_sum(A, w, EPI)
        gen_final(A, w)
        if w < 3: A("s_branch L_fin")
    A("L_fin:")
    stamp(A, 17)
    if STAMPS:
        A("s_lshl_b32 s%d, s%d, 2\ns_add_u32 s%d, s%d, s%d\ns_lshl_b32 s%d, s%d, 8\ns_add_u32 s%d, s%d, %d" % (S_T0, S_WG, S_T0, S_T0, S_W, S_T0, S_T0, S_T0, S_T0, WS_DBG))
        A("v_lshlrev_b32 v21, 2, v%d\nbuffer_store_dword v0, v21, s[20:23], s%d offen\ns_waitcnt vmcnt(0)" % (V_LANE, S_T0))
    A("L_end:\ns_endpgm")
    emit_slow(A)

def gen_final(A, w):
    tile, rg = w >> 1, w & 1
    AC = ACC + 16 * w
    L = EPI
    A("s_lshl_b32 s%d, s%d, 4\ns_add_u32 s%d, s%d, s%d\ns_lshl_b32 s%d, s%d, 5\ns_add_u32 s%d, s%d, %d" % (S_T3, S_R, S_T3, S_T3, S_J, S_T3, S_T3, S_T3, S_T3, WS_FP))
    lab = "L_p3_%d" % w
    A("v_lshlrev_b32 v21, 2, v%d" % V_LANE)
    A("v_cmp_gt_u32 vcc, 8, v%d\ns_mov_b64 s[0:1], vcc" % V_LANE)
    A("v_cmp_ne_u32 vcc, s%d, v%d\ns_and_b64 s[0:1], s[0:1], vcc" % (S_J, V_LANE))
    A("s_mov_b32 s%d, 0" % S_T2)
    A("%s:" % lab)
    A("buffer_load_dword v22, v21, s[20:23], s%d offen sc1" % S_T3)
    A("s_add_u32 s%d, s%d, 1\ns_waitcnt vmcnt(0)" % (S_T2, S_T2))
    A("v_cmp_ne_u32 vcc, s%d, v22\ns_and_b64 vcc, vcc, s[0:1]\ns_cbranch_vccz %s_ok" % (S_NONCE, lab))
    A("s_cmp_gt_u32 s%d, %d\ns_cbranch_scc1 %s_ok\ns_branch %s" % (S_T2, SPIN, lab, lab))
    A("%s_ok:" % lab)
    stamp(A, 16)
    for i in range(7):
        A("s_add_u32 s%d, s%d, %d\ns_and_b32 s%d, s%d, 7" % (S_T0, S_J, 1 + i, S_T0, S_T0))
        A("s_lshl_b32 s%d, s%d, 3\ns_add_u32 s%d, s%d, s%d\ns_mul_i32 s%d, s%d, 9\ns_add_u32 s%d, s%d, s%d\ns_lshl_b32 s%d, s%d, 13" % (S_T1, S_R, S_T0, S_T0, S_T1, S_T0, S_T0, S_T0, S_T0, S_J, S_T0, S_T0))
        A("s_add_u32 s%d, s%d, %d" % (S_T0, S_T0, w * 2048))
        for half in range(2):
            A("buffer_load_dwordx4 v[%d:%d], v%d, s[20:23], s%d offen offset:%d sc1" % (L + 8 * i + 4 * half, L + 8 * i + 4 * half + 3, V_L16, S_T0, half * 1024))
    A("s_lshl_b32 s%d, s%d, 6\ns_add_u32 s%d, s%d, %d\ns_mul_i32 s%d, s%d, 1152" % (S_T0, S_R, S_T0, S_T0, 32 * rg, S_T0, S_T0))
    A("s_lshl_b32 s%d, s%d, 7\ns_add_u32 s%d, s%d, s%d\ns_add_u32 s%d, s%d, %d" % (S_T1, S_J, S_T0, S_T0, S_T1, S_T0, S_T0, 64 * tile))
    A("v_and_b32 v21, 31, v%d\nv_mul_u32_u24 v21, 1152, v21\nv_lshrrev_b32 v22, 5, v%d\nv_lshl_add_u32 v21, v22, 4, v21" % (V_LANE, V_LANE))
    X = TMP
    for half in range(2):
        A("buffer_load_dwordx4 v[%d:%d], v21, s[8:11], s%d offen offset:%d" % (X + 4 * half, X + 4 * half + 3, S_T0, 32 * half))
    for i in range(7):
        A("s_waitcnt vmcnt(%d)" % (2 + 2 * (6 - i)))
        for p in range(8):
            r = L + 8 * i + p
            A("v_lshlrev_b32 v22, 16, v%d\nv_and_b32 v23, 0xffff0000, v%d" % (r, r))
            A("v_add_f32 v%d, v%d, v22\nv_add_f32 v%d, v%d, v23" % (AC + 2 * p, AC + 2 * p, AC + 2 * p + 1, AC + 2 * p + 1))
    out_store(A, AC, X, 21, S_T0, 2)
    if w == 3:
        gen_unit8(A)

def out_store(A, AC, X, vaddr, soff, nhalf):
    A("s_nop 1")
    for half in range(nhalf):
        for i in range(4): A("v_permlane32_swap_b32 v%d, v%d" % (AC + 8 * half + i, AC + 8 * half + 4 + i))
    A("s_waitcnt vmcnt(0)\ns_nop 1")
    for half in range(nhalf):
        for p in range(4):
            r = X + 4 * half + p; a = AC + 8 * half + 2 * p
            A("v_lshlrev_b32 v22, 16, v%d\nv_and_b32 v23, 0xffff0000, v%d" % (r, r))
            A("v_add_f32 v%d, v%d, v22\nv_add_f32 v%d, v%d, v23" % (a, a, a + 1, a + 1))
        for p in range(4): A("v_cvt_pk_bf16_f32 v%d, v%d, v%d" % (X + 4 * half + p, AC + 8 * half + 2 * p, AC + 8 * half + 2 * p + 1))
        A("buffer_store_dwordx4 v[%d:%d], v%d, s[24:27], s%d offen offset:%d" % (X + 4 * half, X + 4 * half + 3, vaddr, soff, 32 * half))

def gen_unit8(A):
    L = EPI; AC = ACC
    A("s_lshl_b32 s%d, s%d, 4\ns_add_u32 s%d, s%d, 8\ns_lshl_b32 s%d, s%d, 5\ns_add_u32 s%d, s%d, %d" % (S_T3, S_R, S_T3, S_T3, S_T3, S_T3, S_T3, S_T3, WS_FP))
    poll_flags(A, "L_p4", S_T3, 8)
    for i in range(8):
        A("s_lshl_b32 s%d, s%d, 3\ns_add_u32 s%d, s%d, %d\ns_mul_i32 s%d, s%d, 9\ns_add_u32 s%d, s%d, 8\ns_lshl_b32 s%d, s%d, 13" % (S_T0, S_R, S_T0, S_T0, i, S_T0, S_T0, S_T0, S_T0, S_T0, S_T0))
        A("s_lshl_b32 s%d, s%d, 10\ns_add_u32 s%d, s%d, s%d" % (S_T1, S_J, S_T0, S_T0, S_T1))
        A("buffer_load_dwordx4 v[%d:%d], v%d, s[20:23], s%d offen sc1" % (L + 4 * i, L + 4 * i + 3, V_L16, S_T0))
    A("s_bfe_u32 s%d, s%d, 0x10001\ns_lshl_b32 s%d, s%d, 5" % (S_T1, S_J, S_T1, S_T1))
    A("s_lshl_b32 s%d, s%d, 6\ns_add_u32 s%d, s%d, s%d\ns_mul_i32 s%d, s%d, 1152" % (S_T0, S_R, S_T0, S_T0, S_T1, S_T0, S_T0))
    A("s_lshr_b32 s%d, s%d, 2\ns_lshl_b32 s%d, s%d, 6\ns_add_u32 s%d, s%d, s%d" % (S_T1, S_J, S_T1, S_T1, S_T0, S_T0, S_T1))
    A("s_and_b32 s%d, s%d, 1\ns_lshl_b32 s%d, s%d, 5\ns_add_u32 s%d, s%d, s%d\ns_add_u32 s%d, s%d, 1024" % (S_T1, S_J, S_T1, S_T1, S_T0, S_T0, S_T1, S_T0, S_T0))
    X = TMP + 8
    A("v_and_b32 v21, 31, v%d\nv_mul_u32_u24 v21, 1152, v21\nv_lshrrev_b32 v22, 5, v%d\nv_lshl_add_u32 v21, v22, 4, v21" % (V_LANE, V_LANE))
    A("buffer_load_dwordx4 v[%d:%d], v21, s[8:11], s%d offen" % (X, X + 3, S_T0))
    A("s_waitcnt vmcnt(1)")
    for p in range(4):
        A("v_lshlrev_b32 v%d, 16, v%d\nv_and_b32 v%d, 0xffff0000, v%d" % (AC + 2 * p, L + p, AC + 2 * p + 1, L + p))
    for i in range(1, 8):
        for p in range(4):
            r = L + 4 * i + p
            A("v_lshlrev_b32 v22, 16, v%d\nv_and_b32 v23, 0xffff0000, v%d" % (r, r))
            A("v_add_f32 v%d, v%d, v22\nv_add_f32 v%d, v%d, v23" % (AC + 2 * p, AC + 2 * p, AC + 2 * p + 1, AC + 2 * p + 1))
    out_store(A, AC, X, 21, S_T0, 1)

def kd(name, vgpr, accum, sgpr=102):
    return """.amdhsa_kernel %s
  .amdhsa_next_free_vgpr %d
  .amdhsa_next_free_sgpr %d
  .amdhsa_accum_offset %d
  .amdhsa_group_segment_fixed_size 0
  .amdhsa_kernarg_size 72
  .amdhsa_user_sgpr_count 2
  .amdhsa_user_sgpr_kernarg_segment_ptr 1
  .amdhsa_system_sgpr_workgroup_id_x 1
.end_amdhsa_kernel""" % (name, vgpr, sgpr, accum)

def main(out):
    hdr = open("cdna_kernels/%s.s.ref" % KNAME).read().split("; Override launch geometry")[0]
    A = Asm()
    A(hdr.rstrip())
    A("; @launch grid=(256,1,1) block=(256,1,1) lds=%d" % LDS_TOTAL)
    A('.amdgcn_target "amdgcn-amd-amdhsa--gfx950"')
    gen_prologue(A)
    gen_F(A)
    gen_P(A)
    A('.section .rodata,"a"\n.p2align 6')
    A(kd(KNAME + "_kernel", 512, 256))
    open(out, "w").write(A.text())

if __name__ == "__main__":
    if len(sys.argv) > 2 and sys.argv[2] == "stamps": STAMPS = True
    main(sys.argv[1] if len(sys.argv) > 1 else "cdna_kernels/%s.s" % KNAME)
```
